```python
import torch

def _softmax(x, axis=-1):
    return torch.softmax(x, dim=axis)

def _gelu(x):
    return torch.nn.functional.gelu(x, approximate='tanh')

def _silu(x):
    return torch.nn.functional.silu(x)

def _sigmoid(x):
    return torch.sigmoid(x)

def _layernorm(x, axis=-1, eps=1e-05):
    m = x.mean(dim=axis, keepdim=True)
    v = x.var(dim=axis, keepdim=True, unbiased=False)
    return (x - m) / torch.sqrt(v + eps)

def _scatter_add(tgt, idx, src, axis=0):
    return tgt.clone().index_add_(axis, idx, src)

def _segment_sum(src, seg, n):
    out = torch.zeros((n,) + src.shape[1:], dtype=src.dtype)
    return out.index_add_(0, seg, src)

def _pad(x, pw):
    flat = tuple((v for pair in reversed(pw) for v in pair))
    return torch.nn.functional.pad(x, flat)
kernel_name = 'concat_heads__spectral_gfnet__memory_aug_recurrent_mem_tr__prompt'

def setup_inputs():

    _w = lambda a: (lambda t: t.to(torch.bfloat16) if t.is_floating_point() else t)(torch.as_tensor(a))

    def _A_setup():
        B, S, D = (1, 2048, 448)
        Df = D // 2 + 1
        return {'x': _w((lambda *s: torch.randn(*s, dtype=torch.bfloat16) * 0.05)(B, S, D)), 'w_r': _w((lambda *s: torch.randn(*s, dtype=torch.bfloat16) * 3.2)(S, Df) * 0.02), 'w_i': _w((lambda *s: torch.randn(*s, dtype=torch.bfloat16) * 3.2)(S, Df) * 0.02)}
    _A_in = _A_setup()

    def _B_setup():
        B, S, Dm = (1, 2048, 448)
        H, Dh = (16, 256)
        M, seg = (8, 32)
        seg = min(seg, S)
        S = S // seg * seg
        return {'x': _w((lambda *s: torch.randn(*s, dtype=torch.bfloat16) * 0.05)(B, S, Dm)), 'mem0': _w((lambda *s: torch.randn(*s, dtype=torch.bfloat16) * 0.4)(B, M, Dm)), 'Wq': _w((lambda *s: torch.randn(*s, dtype=torch.bfloat16) * 6.4)(Dm, H, Dh) * Dm ** (-0.5)), 'Wk': _w((lambda *s: torch.randn(*s, dtype=torch.bfloat16) * 6.4)(Dm, H, Dh) * Dm ** (-0.5)), 'Wv': _w((lambda *s: torch.randn(*s, dtype=torch.bfloat16) * 0.4)(Dm, H, Dh) * Dm ** (-0.5)), 'Wo': _w((lambda *s: torch.randn(*s, dtype=torch.bfloat16) * 0.4)(H, Dh, Dm) * (H * Dh) ** (-0.5)), 'seg_len': seg}
    _B_in = _B_setup()
    return {'A_x': _A_in['x'], 'A_w_r': _A_in['w_r'], 'A_w_i': _A_in['w_i'], 'B_x': _B_in['x'], 'B_mem0': _B_in['mem0'], 'B_Wq': _B_in['Wq'], 'B_Wk': _B_in['Wk'], 'B_Wv': _B_in['Wv'], 'B_Wo': _B_in['Wo'], 'B_seg_len': _B_in['seg_len']}

def reference(A_x, A_w_r, A_w_i, B_x, B_mem0, B_Wq, B_Wk, B_Wv, B_Wo, B_seg_len):

    def _A_ref(x, w_r, w_i):
        B, S, D = x.shape
        X = (lambda x, axes=(-2, -1): torch.fft.rfft2(x.float(), dim=axes))(x, axes=(-2, -1))
        W = w_r + 1j * w_i
        X = X * W
        y = (lambda x, s, axes=(-2, -1): torch.fft.irfft2(x, s=s, dim=axes).to(torch.bfloat16))(X, (S, D), axes=(-2, -1))
        return y

    def _B_ref(x, mem0, Wq, Wk, Wv, Wo, seg_len):
        B, S, Dm = x.shape
        H, Dh = (Wq.shape[1], Wq.shape[2])
        M = mem0.shape[1]
        scale = Dh ** (-0.5)
        n_seg = S // seg_len
        L = M + seg_len
        idx = torch.arange(L)
        mask = (idx[:, None] < M) | (idx[:, None] >= idx[None, :])
        mem = mem0
        outs = []
        for s in range(n_seg):
            xs = x[:, s * seg_len:(s + 1) * seg_len, :].clone()
            h = torch.concatenate([mem, xs], axis=1)
            q = torch.einsum('btd,dhe->bhte', h, Wq)
            k = torch.einsum('btd,dhe->bhte', h, Wk)
            v = torch.einsum('btd,dhe->bhte', h, Wv)
            scores = torch.einsum('bhqe,bhke->bhqk', q, k) * scale
            scores = torch.where(mask[None, None], scores, -1000000000.0)
            p = _softmax(scores, axis=-1)
            o = torch.einsum('bhqk,bhke->bhqe', p, v)
            o = torch.einsum('bhte,hed->btd', o, Wo)
            mem = o[:, :M, :].clone()
            outs.append(o[:, M:, :])
        return torch.concatenate(outs, axis=1)
    a = _A_ref(A_x, A_w_r, A_w_i)
    b = _B_ref(B_x, B_mem0, B_Wq, B_Wk, B_Wv, B_Wo, B_seg_len)
    return torch.concatenate([a, b], axis=-1)
```

```python
from emit import *
from layout import *
from k1 import add64
from k2 import SPIN, LB
NSTEP = 63
def wA(i, n=4):
    return ar(i, n) if i < 256 else vr(120 + i - 256, n)
def wB(i, n=4):
    return ar(i, n) if i < 256 else vr(176 + i - 256, n)

def load_A(K):
    a = K.a
    a(f"""
    s_lshl_b32 s27, s26, 2
    s_add_u32 s27, s27, s3
    s_mul_i32 s27, s27, 100352
    s_add_u32 s27, s27, 4096
    v_add_u32 v2, s27, v1
    """)
    for i in range(98):
        a(f"global_load_dwordx4 {wA(4*i)}, v2, s[12:13] offset:{(i % 8)*1024 - 4096}")
        if i % 8 == 7: a("v_add_u32 v2, 8192, v2")
        if i >= 56 and i % 8 == 7: a("s_waitcnt vmcnt(48)")
def load_B(K):
    a = K.a
    a(f"""
    s_mul_i32 s27, s26, 458752
    s_mul_i32 s28, s3, 114688
    s_add_u32 s27, s27, s28
    s_add_u32 s27, s27, {WB + 4096}
    v_add_u32 v2, s27, v1
    v_add_u32 v3, {84*1024 - 4096}, v2
    s_mul_i32 s28, s3, 28672
    """)
    for i in range(28):
        if i % 4 == 0:
            a(f"s_add_u32 m0, s28, {i*1024}")
            if i: a("v_add_u32 v3, 4096, v3")
        a(f"global_load_lds_dwordx4 v3, s[12:13] offset:{(i % 4)*1024}")
    for i in range(84):
        a(f"global_load_dwordx4 {wB(4*i)}, v2, s[12:13] offset:{(i % 8)*1024 - 4096}")
        if i % 8 == 7: a("v_add_u32 v2, 8192, v2")
        if i >= 24 and i % 8 == 7: a("s_waitcnt vmcnt(48)")

def st_mode(a, ins):
    L1 = a.newlab("SM"); L2 = a.newlab("SM")
    a(f"s_cbranch_scc0 {L1}")
    for i in ins: a(i)
    a(f"s_branch {L2}\n{L1}:")
    for i in ins: a(i + (" sc1" if i.startswith("global_store") else ""))
    a(f"{L2}:")

def idx_setup(a, reg):
    a(f"""
    v_and_b32 v2, 8, v0
    v_cmp_ne_u32 s[50:51], 0, v2
    v_mov_b32 v2, 0x4444
    v_mov_b32 v3, 0xeeee
    v_cndmask_b32 {reg}, v2, v3, s[50:51]
    """)

def u_phase(a, MA, UA, WT_, vlds):
    def rd(n):
        b = WT_ + 8*(n & 1)
        a(f"ds_read_b128 {vr(b,4)}, {vlds} offset:{n*2048}\nds_read_b128 {vr(b+4,4)}, {vlds} offset:{n*2048+1024}")
    order = [(j, t) for j in range(7) for t in range(2)]
    nn = lambda q: order[q][1]*7 + order[q][0]
    def rdq(q):
        b = WT_ + 8*(q & 1); n = nn(q)
        a(f"ds_read_b128 {vr(b,4)}, {vlds} offset:{n*2048}\nds_read_b128 {vr(b+4,4)}, {vlds} offset:{n*2048+1024}")
    rdq(0); rdq(1)
    for q, (j, t) in enumerate(order):
        for hl in range(3):
            a(f"v_smfmac_f32_16x16x64_bf16 {vr(UA+(hl*2+t)*4,4)}, {vr(MA+4*j,4)}, {wB(((hl*2+t)*7+j)*8,8)}, v4")
        a(f"s_waitcnt lgkmcnt({2 if q < 13 else 0})")
        a(f"v_smfmac_f32_16x16x64_bf16 {vr(UA+(6+t)*4,4)}, {vr(MA+4*j,4)}, {vr(WT_+8*(q&1),8)}, v4")
        if q + 2 < 14: rdq(q+2)

def full_check(a, regs, tmp):
    regs = list(regs)
    a(f"v_max3_u32 {tmp}, v{regs[0]}, v{regs[1]}, v{regs[2]}")
    rest = regs[3:]
    while len(rest) >= 2:
        a(f"v_max3_u32 {tmp}, {tmp}, v{rest[0]}, v{rest[1]}"); rest = rest[2:]
    if rest: a(f"v_max_u32 {tmp}, {tmp}, v{rest[0]}")
    a(f"v_cmp_eq_u32 vcc, -1, {tmp}")

def gen_chain(K):
    a = K.a; o = K.o
    a.label("ROLE_CHAIN")
    a("v_mbcnt_lo_u32_b32 v0, -1, 0\nv_mbcnt_hi_u32_b32 v0, -1, v0\nv_lshlrev_b32 v1, 4, v0")
    L = a.newlab("RG")
    a(f"""
    s_cmp_lg_u32 s3, 0
    s_cbranch_scc1 {L}
    s_mov_b64 exec, 1
    s_lshl_b32 s23, 1, s20
    v_mov_b32 v2, s23
    v_mov_b32 v3, {C_MASK}
    global_atomic_or v2, v3, v2, s[18:19] sc0 sc1
    s_waitcnt vmcnt(0)
    v_mov_b32 v2, 1
    v_mov_b32 v3, {C_READY}
    global_atomic_add v3, v2, s[18:19] sc1
    s_mov_b64 exec, -1
    {L}:
    s_mov_b32 s43, 1
    s_cmp_lt_u32 s21, 16
    s_cbranch_scc0 CH_B
    s_mov_b32 s26, s21
    s_branch LOAD_A
    CH_B:
    s_sub_u32 s26, s21, 16
    s_branch LOAD_B
    ROLE_HA:
    s_mov_b32 s43, 0
    s_mov_b32 s26, s21
    LOAD_A:
    """)
    load_A(K)
    a("s_cmp_eq_u32 s43, 0\ns_cbranch_scc1 HA_start")
    def team_wait():
        K.wait_cnt(C_READY, 30, 3)
        a(f"""
        v_mov_b32 v3, {C_MASK}
        global_load_dword v2, v3, s[18:19] sc1
        s_waitcnt vmcnt(0)
        v_readfirstlane_b32 s23, v2
        s_bcnt1_i32_b32 s23, s23
        s_cmp_eq_u32 s23, {1 if not o.get('slow') else 77}
        s_cselect_b32 s23, 1, 0
        """)
    MA, T, XK, MK = 8, 36, 64, 96
    idx_setup(a, "v4")
    a(f"""
    v_and_b32 v8, 15, v0                 ; c
    v_lshrrev_b32 v9, 4, v0              ; g
    s_mul_i32 s27, s3, 224
    v_lshlrev_b32 v10, 4, v9
    v_add_u32 v10, s27, v10
    v_lshrrev_b32 v11, 1, v9
    v_mul_u32_u24 v11, 24, v11
    v_and_b32 v12, 1, v9
    v_lshl_add_u32 v11, v12, 3, v11
    v_add_u32 v11, s27, v11
    v_add_u32 v11, 128, v11
    v_and_b32 v12, 7, v8
    v_mul_u32_u24 v12, 896, v12
    v_add_u32 v5, v12, v10
    v_add_u32 v6, v12, v11
    v_mul_u32_u24 v12, 1792, v8
    v_add_u32 v7, v12, v10
    v_add_u32 v13, v12, v11              ; -> v0 later
    v_lshrrev_b32 v12, 5, v0
    s_lshl_b32 s27, s3, 1
    v_add_u32 v12, s27, v12              ; i
    s_lshl_b32 s27, s26, 9
    v_lshlrev_b32 v112, 6, v12
    v_lshl_add_u32 v112, v8, 2, v112
    v_add_u32 v112, s27, v112
    s_lshl_b32 s27, s26, 7
    s_add_u32 s27, s27, 8192
    v_lshlrev_b32 v113, 4, v12
    v_lshl_add_u32 v113, v8, 1, v113
    v_add_u32 v113, s27, v113
    s_mul_i32 s27, s3, 3072
    v_add_u32 v114, s27, v1
    v_mul_u32_u24 v115, 3072, v9
    v_lshl_add_u32 v115, v8, 4, v115
    s_lshr_b32 s27, s3, 1
    s_lshl_b32 s27, s27, 8
    s_and_b32 s28, s3, 1
    s_lshl_b32 s28, s28, 3
    s_add_u32 s27, s27, s28
    v_add_u32 v115, s27, v115
    ; Sel: lane (c=(tile',i), g): e=(tsel,r): 1 if tsel==tile' and (4g+r)%8==i
    v_and_b32 v10, 1, v9
    v_lshlrev_b32 v10, 2, v10
    v_and_b32 v11, 7, v8
    v_sub_u32 v10, v11, v10              ; r* = i - 4(g&1)
    v_lshrrev_b32 v11, 3, v8
    v_lshl_add_u32 v10, v11, 2, v10
    v_and_b32 v12, 4, v8
    v_lshrrev_b32 v12, 2, v12
    v_and_b32 v14, 1, v9
    v_cmp_eq_u32 vcc, v12, v14
    v_cndmask_b32 v10, 15, v10, vcc
    v_mov_b32 v11, 0x3f80
    v_mov_b32 v12, 0x3f800000
    """)
    for k in range(4):
        a(f"""
        v_cmp_eq_u32 vcc, {2*k}, v10
        v_cndmask_b32 v{116+k}, 0, v11, vcc
        v_cmp_eq_u32 vcc, {2*k+1}, v10
        v_cndmask_b32 v{116+k}, v{116+k}, v12, vcc
        """)
    a(f"""
    v_mov_b32 v0, v13
    s_mov_b32 s44, 0x0000ffff
    s_mov_b32 s45, 0x0000ffff
    s_mov_b32 s46, 0x00ff0000
    s_mov_b32 s47, 0x00ff0000
    s_mov_b32 s40, 0
    s_mov_b64 s[32:33], s[10:11]
    """)
    add64(a, 30, 12, MX + 3072); add64(a, 34, 12, NX); add64(a, 36, 12, PS)
    a(f"""
    s_mov_b64 s[38:39], s[12:13]
    s_mov_b32 s54, 0
    s_cmp_lg_u32 s3, 0
    s_cbranch_scc1 A_pf_done
    s_cmp_lt_u32 s26, 8
    s_cbranch_scc1 A_pf_done
    s_cmp_lt_u32 s26, 12
    s_cbranch_scc0 A_pf_ws
    s_sub_u32 s27, s26, 8
    s_mul_i32 s27, s27, 6912
    s_min_u32 s27, s27, 20480
    s_add_u32 s27, s27, {2*28672}
    s_add_u32 s38, s10, s27
    s_addc_u32 s39, s11, 0
    s_mov_b32 s54, 28672
    s_branch A_pf_done
    A_pf_ws:
    s_mov_b32 s54, 7168
    s_mov_b32 s27, {MX + 2*7168}
    s_cmp_eq_u32 s26, 13
    s_cselect_b32 s27, {NX + 2*7168}, s27
    s_cmp_ge_u32 s26, 14
    s_cselect_b32 s54, 10240, s54
    s_cmp_eq_u32 s26, 14
    s_cselect_b32 s27, {PS + 2*10240}, s27
    s_cmp_eq_u32 s26, 15
    s_cselect_b32 s27, {PS + 2*10240 + 2048}, s27
    s_add_u32 s38, s12, s27
    s_addc_u32 s39, s13, 0
    A_pf_done:
    s_sub_u32 s56, s38, s54
    s_subb_u32 s57, s39, 0
    v_lshlrev_b32 v3, 3, v1
    global_load_dword v2, v3, s[56:57] sc1
    s_sub_u32 s56, s56, s54
    s_subb_u32 s57, s57, 0
    s_nop 0
    global_load_dword v2, v3, s[56:57] sc1
    """)
    team_wait()
    K.stamp(4)
    def xkeys():
        for kt in range(2):
            a(f"""
            global_load_dwordx4 {vr(XK+16*kt,4)}, v7, s[32:33] offset:{896*kt}
            global_load_dwordx4 {vr(XK+16*kt+4,4)}, v7, s[32:33] offset:{896*kt+64}
            global_load_dwordx4 {vr(XK+16*kt+8,4)}, v0, s[32:33] offset:{896*kt}
            global_load_dwordx4 {vr(XK+16*kt+12,4)}, v0, s[32:33] offset:{896*kt+48}
            """)
    def mkeys(base="s[34:35]", st=False):
        for q, (ad, of) in enumerate((("v5", 0), ("v5", 64), ("v6", 0), ("v6", 48))):
            if st: a(f"global_store_dwordx4 {ad}, {vr(MK+4*q,4)}, {base} offset:{of} sc1")
            else: a(f"global_load_dwordx4 {vr(MK+4*q,4)}, {ad}, {base} offset:{of} sc1")
    def chunk(j): a(f"global_load_dwordx4 {vr(MA+4*j,4)}, v1, s[30:31] offset:{1024*j-3072} sc1")
    def tmf(t, j): return f"v_smfmac_f32_16x16x64_bf16 {vr(T+4*t,4)}, {vr(MA+4*j,4)}, {wA((t*7+j)*8,8)}, v4"
    def zeroT():
        for i in range(14): a(f"v_mov_b64 {vr(T+2*i,2)}, 0")
    xkeys()
    a.label("A_top")
    zeroT()
    a(f"s_mov_b32 s41, {SPIN}\ns_mov_b32 s42, 0")
    a.label("A_poll")
    for j in range(3): chunk(j)
    K.bails.add(4)
    a(f"""
    s_sub_u32 s41, s41, 1
    s_cbranch_scc1 BAIL_4
    s_waitcnt vmcnt(0)
    v_max3_u32 v2, v{MA}, v{MA+4}, v{MA+8}
    v_cmp_eq_u32 vcc, -1, v2
    s_cbranch_vccnz A_poll
    """)
    for j in range(3, 7): chunk(j)
    mkeys()
    a("A_ph1:")
    first = True
    for j in range(3):
        for t in range(7):
            a(tmf(t, j))
            if first:
                a("v_lshlrev_b32 v3, 3, v1"); first = False
    a("global_load_dword v3, v3, s[38:39] sc1")
    a("A_late:")
    a(f"""
    s_waitcnt vmcnt(5)
    v_max3_u32 v2, v{MA+12}, v{MA+16}, v{MA+20}
    v_max_u32 v2, v2, v{MA+24}
    v_cmp_eq_u32 vcc, -1, v2
    s_cbranch_vccnz A_late_retry
    """)
    SA = 8
    cv = lambda d, x, y: f"v_cvt_pk_bf16_f32 v{d}, v{x}, v{y}"
    def cvt4(b): return [cv(b+i, b+2*i, b+2*i+1) for i in range(4)]
    def tr(d, s): return f"v_mfma_f32_16x16x32_bf16 {vr(d,4)}, {vr(s,4)}, v[116:119], 0"
    def smf(kt, s):
        kb = (MK if kt == 0 else XK + 16*(kt-1)) + 8*s
        return f"v_smfmac_f32_16x16x64_bf16 {vr(SA+4*kt,4)}, {vr(36 if s == 0 else 52,4)}, {vr(kb,8)}, v4"
    z = [f"v_mov_b64 {vr(SA+2*i,2)}, 0" for i in range(6)]
    M = tmf; c45 = cvt4(52); c01 = cvt4(36); c23 = cvt4(44)
    seq = [M(6,3), M(4,3), M(6,4), M(5,3), M(6,5), M(4,4), M(6,6), M(5,4), z[0], M(4,5), z[1], M(5,5), z[2], M(4,6), z[3], M(5,6),
           cv(60,60,61), M(0,3), cv(61,62,63), M(1,3), "v_mov_b64 v[62:63], v[60:61]", M(0,4), c45[0], M(1,4), tr(16,60), c45[1],
           M(0,5), c45[2], M(1,5), c45[3], M(0,6), M(1,6), tr(56,52), M(2,3), cv(60,16,17), M(3,3), cv(61,18,19), M(2,4),
           "v_cndmask_b32 v55, v60, v61, s[50:51]", M(3,4), c01[0], M(2,5), c01[1], M(3,5), c01[2], M(2,6), c01[3], M(3,6),
           cv(52,56,57), cv(53,58,59), "v_mov_b32 v54, 0", tr(40,36), z[4], z[5], "s_waitcnt vmcnt(1)", smf(0,1), smf(1,1),
           c23[0], c23[1], smf(2,1), c23[2], c23[3], cv(36,40,41), cv(37,42,43), tr(48,44),
           cv(38,48,49), cv(39,50,51), smf(0,0), smf(1,0), smf(2,0)]
    for x in seq: a(x)
    a(f"""
    ds_write_b128 v114, v[8:11]
    ds_write_b128 v114, v[12:15] offset:1024
    ds_write_b128 v114, v[16:19] offset:2048
    v_cmp_u_f32 vcc, v8, v8
    s_cbranch_vccnz A_nan
    A_ok:
    s_waitcnt lgkmcnt(0)
    s_barrier
    ds_read2st64_b64 v[8:11], v115 offset0:0 offset1:1
    ds_read2st64_b64 v[12:15], v115 offset0:2 offset1:3
    ds_read2st64_b64 v[16:19], v115 offset0:4 offset1:5
    s_cmp_lg_u32 s23, 0
    s_waitcnt lgkmcnt(2)
    v_pk_add_f32 v[8:9], v[8:9], v[10:11]
    s_waitcnt lgkmcnt(1)
    v_pk_add_f32 v[12:13], v[12:13], v[14:15]
    s_waitcnt lgkmcnt(0)
    v_pk_add_f32 v[16:17], v[16:17], v[18:19]
    v_permlane32_swap_b32 v8, v9
    v_permlane32_swap_b32 v12, v13
    v_permlane32_swap_b32 v16, v17
    v_add_f32 v8, v8, v9
    v_add_f32 v12, v12, v13
    v_add_f32 v16, v16, v17
    v_mov_b32 v9, v8
    v_mov_b32 v13, v12
    v_mov_b32 v17, v16
    v_permlane16_swap_b32 v8, v9
    v_permlane16_swap_b32 v12, v13
    v_permlane16_swap_b32 v16, v17
    v_add_f32 v8, v8, v9
    v_add_f32 v12, v12, v13
    v_add_f32 v16, v16, v17
    v_max3_f32 v2, v8, v12, v16
    """)
    for r in (8, 4, 2, 1): a(f"v_max_f32_dpp v2, v2, v2 row_ror:{r} row_mask:0xf bank_mask:0xf")
    a("""
    v_sub_f32 v8, v8, v2
    v_sub_f32 v12, v12, v2
    v_sub_f32 v16, v16, v2
    v_exp_f32 v8, v8
    v_exp_f32 v12, v12
    v_exp_f32 v16, v16
    v_fma_f32 v2, 0.5, v8, v12
    v_add_f32 v2, v2, v16
    """)
    for r in (8, 4, 2, 1): a(f"v_add_f32_dpp v2, v2, v2 row_ror:{r} row_mask:0xf bank_mask:0xf")
    a("""
    v_rcp_f32 v2, v2
    v_mul_f32_e64 v12, v12, v2 clamp
    v_mul_f32_e64 v16, v16, v2 clamp
    v_mul_f32_e64 v8, v8, v2 clamp
    v_cvt_pk_bf16_f32 v12, v12, v16
    v_cvt_pk_bf16_f32 v8, v8, v8
    """)
    st_mode(a, ["s_mov_b64 exec, s[44:45]", "global_store_dword v112, v12, s[36:37]", "s_mov_b64 exec, s[46:47]", "global_store_short v113, v8, s[36:37]"])
    a(f"""
    s_mov_b64 exec, -1
    s_add_u32 s40, s40, 1
    s_cmp_ge_u32 s40, {NSTEP}
    s_cbranch_scc1 CH_end
    s_cmp_lt_u32 s40, 62
    s_cselect_b32 s55, s54, 0
    """)
    add64(a, 38, 38, "s55"); add64(a, 30, 30, 7168); add64(a, 34, 34, 7168); add64(a, 36, 36, 10240); add64(a, 32, 32, 28672)
    a("s_nop 0")
    xkeys()
    a("s_branch A_top")
    a("A_late_retry:")
    for j in range(3, 7): chunk(j)
    a(f"""
    s_sub_u32 s41, s41, 1
    s_cbranch_scc1 BAIL_4
    s_waitcnt vmcnt(0)
    s_branch A_late
    A_nan:
    s_cmp_lg_u32 s42, 0
    s_cbranch_scc1 A_ok
    s_mov_b32 s42, 1
    s_nop 7
    """)
    zeroT()
    a("A_redo:")
    for j in range(7): chunk(j)
    mkeys()
    a("s_sub_u32 s41, s41, 1\ns_cbranch_scc1 BAIL_4\ns_waitcnt vmcnt(0)")
    full_check(a, list(range(MA, MA+28)) + list(range(MK, MK+16)), "v2")
    a("s_cbranch_vccnz A_redo\ns_branch A_ph1")
    a("CH_end:")
    K.stamp(5)
    a("s_endpgm")
    a("ROLE_HB:\ns_mov_b32 s43, 0\ns_mov_b32 s26, s21\nLOAD_B:")
    load_B(K)
    idx_setup(a, "v4")
    a(f"""
    s_mul_i32 s27, s3, 28672
    v_add_u32 v5, s27, v1
    s_cmp_eq_u32 s43, 0
    s_cbranch_scc1 HB_start
    v_and_b32 v8, 15, v0                 ; c / m
    v_lshrrev_b32 v9, 4, v0              ; g
    v_lshrrev_b32 v10, 3, v8             ; hh
    v_and_b32 v11, 7, v8                 ; i
    s_lshl_b32 s27, s3, 11
    v_lshlrev_b32 v6, 9, v10
    v_lshl_add_u32 v6, v11, 6, v6
    v_lshl_add_u32 v6, v9, 4, v6
    v_add_u32 v6, s27, v6                ; P x addr
    v_and_b32 v12, 2, v9
    v_add_u32 v12, v12, v10
    v_lshlrev_b32 v7, 7, v12
    v_lshl_add_u32 v7, v11, 4, v7
    s_lshl_b32 s27, s3, 9
    s_add_u32 s27, s27, 8192
    v_add_u32 v7, s27, v7
    v_mul_u32_u24 v168, 640, v9
    v_lshrrev_b32 v12, 2, v8
    v_lshl_add_u32 v168, v12, 5, v168
    v_and_b32 v12, 3, v8
    v_lshl_add_u32 v168, v12, 2, v168
    s_mul_i32 s27, s3, 2560
    s_add_u32 s27, s27, 114688
    v_add_u32 v168, s27, v168
    s_lshl_b32 s27, s3, 2
    v_add_u32 v12, s27, v9               ; i
    v_mul_u32_u24 v169, 160, v12
    v_lshl_add_u32 v169, v8, 3, v169
    v_add_u32 v169, 114688, v169
    s_and_b32 s27, s26, 1
    s_lshl_b32 s27, s27, 9
    s_lshr_b32 s28, s26, 1
    s_lshl_b32 s28, s28, 10
    s_add_u32 s27, s27, s28
    v_lshlrev_b32 v170, 8, v10           ; (u>>3)*256
    v_and_b32 v13, 1, v8
    v_lshl_add_u32 v170, v13, 7, v170
    v_lshl_add_u32 v170, v12, 4, v170
    v_lshrrev_b32 v13, 1, v11
    v_lshl_add_u32 v170, v13, 2, v170
    v_add_u32 v170, s27, v170
    v_mul_u32_u24 v171, 896, v12
    v_lshl_add_u32 v171, v8, 2, v171
    s_lshl_b32 s27, s26, 6
    s_add_u32 s27, s27, {NX - MX}
    v_add_u32 v171, s27, v171
    s_lshl_b32 s27, s26, 2
    v_mov_b32 v172, s27
    v_mov_b32 v174, 0
    s_lshl_b32 s27, s26, 15
    s_lshl_b32 s28, s3, 13
    s_add_u32 s27, s27, s28
    s_add_u32 s27, s27, {VO + 4096}
    s_mov_b32 s40, 0
    s_mov_b32 s44, 0x80008000
    """)
    add64(a, 32, 12, "s27"); add64(a, 30, 12, MX + 3072); add64(a, 34, 12, MX + 7168); add64(a, 52, 12, MY); add64(a, 36, 12, PS)
    team_wait()
    UA, WT_, VB, P, OA = 36, 68, 84, 148, 160
    def zeroB():
        for i in range(16): a(f"v_mov_b64 {vr(UA+2*i,2)}, 0")
        for i in range(4): a(f"v_mov_b64 {vr(OA+2*i,2)}, 0")
    zeroB()
    a(f"B_top:\ns_mov_b32 s41, {SPIN}\nB_poll:")
    for j in range(7): chunk(j)
    K.bails.add(5)
    a("s_sub_u32 s41, s41, 1\ns_cbranch_scc1 BAIL_5\ns_waitcnt vmcnt(0)")
    full_check(a, range(MA, MA+28), "v2")
    a(f"""
    s_cbranch_vccnz B_poll
    v_readfirstlane_b32 s27, v174
    s_cmp_eq_u32 s27, 0
    s_cbranch_scc1 B_voflag
    B_vok:
    v_add_u32 v172, 64, v172
    """)
    for i in range(8): a(f"global_load_dwordx4 {vr(VB+4*i,4)}, v1, s[32:33] offset:{1024*i-4096} sc1")
    a(f"""
    global_load_dword v174, v172, s[18:19] sc1
    s_cmp_ge_u32 s3, 2
    s_cbranch_scc1 B_noy
    s_cmp_eq_u32 s40, 0
    s_cbranch_scc1 B_noy
    global_store_dword v170, v175, s[52:53] sc1
    global_store_dword v171, v175, s[52:53] sc1
    B_noy:
    """)
    u_phase(a, MA, UA, WT_, "v5")
    for t in range(2):
        for hp in range(2):
            for rp in range(2):
                for hh in range(2):
                    u = UA + ((2*hp+hh)*2+t)*4 + 2*rp
                    a(cv(WT_ + 8*t + 4*hp + 2*rp + hh, u, u+1))
    a(f"""
    B_pp:
    global_load_dwordx4 {vr(P,4)}, v6, s[36:37] sc1
    global_load_dwordx4 {vr(P+4,4)}, v6, s[36:37] offset:1024 sc1
    global_load_dwordx4 {vr(P+8,4)}, v7, s[36:37] sc1
    s_sub_u32 s41, s41, 1
    s_cbranch_scc1 BAIL_5
    s_waitcnt vmcnt(0)
    v_or3_b32 v2, v{P}, v{P+1}, v{P+2}
    v_or3_b32 v3, v{P+3}, v{P+4}, v{P+5}
    v_or3_b32 v2, v2, v{P+6}, v{P+7}
    v_or3_b32 v3, v3, v{P+8}, v{P+9}
    v_or3_b32 v2, v2, v{P+10}, v{P+11}
    v_or_b32 v2, v2, v3
    v_and_b32 v2, s44, v2
    v_cmp_ne_u32 vcc, 0, v2
    s_cbranch_vccnz B_pp
    """)
    for hp in range(2):
        for t in range(2):
            a(f"v_smfmac_f32_16x16x64_bf16 {vr(OA+4*t,4)}, {vr(P+4*hp,4)}, {vr(VB+(hp*2+t)*8,8)}, v4")
    for t in range(2):
        a(f"v_smfmac_f32_16x16x64_bf16 {vr(OA+4*t,4)}, {vr(P+8,4)}, {vr(WT_+8*t,8)}, v4")
    for r in range(4): a(f"ds_write2_b32 v168, v{OA+r}, v{OA+4+r} offset0:{40*r} offset1:{40*r+4}")
    a(f"""
    s_add_u32 s40, s40, 1
    s_waitcnt lgkmcnt(0)
    s_barrier
    s_cmp_ge_u32 s3, 2
    s_cbranch_scc1 B_nopub
    """)
    for p in range(8): a(f"ds_read_b64 {vr(8+2*p,2)}, v169 offset:{1280*p}")
    a(f"""
    s_cmp_lg_u32 s23, 0
    s_waitcnt lgkmcnt(6)
    v_pk_add_f32 v[8:9], v[8:9], v[10:11]
    s_waitcnt lgkmcnt(4)
    v_pk_add_f32 v[12:13], v[12:13], v[14:15]
    s_waitcnt lgkmcnt(2)
    v_pk_add_f32 v[16:17], v[16:17], v[18:19]
    v_pk_add_f32 v[8:9], v[8:9], v[12:13]
    s_waitcnt lgkmcnt(0)
    v_pk_add_f32 v[20:21], v[20:21], v[22:23]
    v_pk_add_f32 v[8:9], v[8:9], v[16:17]
    v_pk_add_f32 v[8:9], v[8:9], v[20:21]
    v_cvt_pk_bf16_f32 v175, v8, v9
    v_min_u32 v175, -2, v175
    """)
    st_mode(a, ["global_store_dword v170, v175, s[34:35]", "global_store_dword v171, v175, s[34:35]"])
    a("B_nopub:")
    add64(a, 52, 52, 7168)
    a(f"s_cmp_ge_u32 s40, {NSTEP}\ns_cbranch_scc1 B_end")
    add64(a, 30, 30, 7168); add64(a, 34, 34, 7168); add64(a, 36, 36, 10240); add64(a, 32, 32, 14*32768)
    zeroB()
    a(f"""
    s_waitcnt vmcnt(0)
    s_barrier
    s_branch B_top
    B_voflag:
    global_load_dword v174, v172, s[18:19] sc1
    s_sub_u32 s41, s41, 1
    s_cbranch_scc1 BAIL_5
    s_waitcnt vmcnt(0)
    v_readfirstlane_b32 s27, v174
    s_cmp_lg_u32 s27, 0
    s_cbranch_scc1 B_vok
    s_sleep 2
    s_branch B_voflag
    B_end:
    s_cmp_ge_u32 s3, 2
    s_cbranch_scc1 K2_end
    global_store_dword v170, v175, s[52:53] sc1
    global_store_dword v171, v175, s[52:53] sc1
    s_endpgm
    """)

NQ = 4
def xdma(a, lbase, sreg):
    a(f"s_mul_i32 s58, {sreg}, 28672\ns_mul_i32 s59, s3, 7")
    for i in range(7):
        a(f"""
        s_add_u32 s60, s59, {i}
        s_lshl_b32 s61, s60, 10
        s_add_u32 m0, s61, {lbase}
        s_and_b32 s61, s60, 1
        s_mul_i32 s61, s61, 14336
        s_lshr_b32 s60, s60, 1
        s_lshl_b32 s60, s60, 6
        s_add_u32 s60, s60, s61
        s_add_u32 s60, s60, s58
        s_add_u32 s56, s10, s60
        s_addc_u32 s57, s11, 0
        global_load_lds_dwordx4 v6, s[56:57]
        """)
def set_flag(a, sreg):
    L = a.newlab("SF")
    a(f"""
    s_waitcnt vmcnt(0)
    s_barrier
    s_cmp_lg_u32 s3, 0
    s_cbranch_scc1 {L}
    s_mov_b64 exec, 1
    v_mov_b32 v2, 1
    v_mov_b32 v3, {sreg}
    global_store_dword v3, v2, s[18:19] sc1
    s_mov_b64 exec, -1
    {L}:
    """)
def gen_hold(K):
    a = K.a
    cv = lambda d, x, y: f"v_cvt_pk_bf16_f32 v{d}, v{x}, v{y}"
    mf = lambda d, x, y, c: f"v_mfma_f32_16x16x32_bf16 {d}, {x}, {y}, {c}"
    def v6setup():
        a("""
        v_and_b32 v2, 15, v0
        v_lshrrev_b32 v3, 4, v0
        v_mul_u32_u24 v6, 896, v2
        v_lshl_add_u32 v6, v3, 4, v6
        s_mov_b32 s40, s29
        """)
    XI = 114688
    a("HB_start:")
    v6setup()
    xdma(a, XI, "s40")
    a(f"v_add_u32 v7, {XI}, v1\ns_waitcnt vmcnt(0)\ns_barrier\nHB_vo:")
    AC = 36
    def rd(kk):
        b = 8 + 16*(kk & 1)
        a(f"""
        ds_read_b128 {vr(b,4)}, v7 offset:{kk*2048}
        ds_read_b128 {vr(b+4,4)}, v7 offset:{kk*2048+1024}
        ds_read_b128 {vr(b+8,4)}, v5 offset:{kk*1024}
        ds_read_b128 {vr(b+12,4)}, v5 offset:{(14+kk)*1024}
        """)
    AC = 40
    rd(0); rd(1)
    for kk in range(14):
        b = 8 + 16*(kk & 1)
        a(f"s_waitcnt lgkmcnt({4 if kk < 13 else 0})")
        for hl in range(4):
            for t in range(2):
                w = wB(((hl*2+t)*14+kk)*4) if hl < 3 else vr(b+8+4*t, 4)
                for rt in range(2):
                    d = vr(AC + ((hl*2+t)*2+rt)*4, 4)
                    a(mf(d, vr(b+4*rt,4), w, d if kk else 0))
        if kk + 2 < 14: rd(kk+2)
    a(f"""
    s_barrier
    s_add_u32 s41, s40, {NQ}
    s_cmp_ge_u32 s41, 64
    s_cbranch_scc1 HB_nodma
    """)
    xdma(a, XI, "s41")
    a(f"""
    HB_nodma:
    s_mul_i32 s27, s40, 14
    s_add_u32 s27, s27, s26
    s_lshl_b32 s27, s27, 15
    s_lshl_b32 s28, s3, 13
    s_add_u32 s27, s27, s28
    s_add_u32 s27, s27, {VO + 4096}
    """)
    add64(a, 32, 12, "s27")
    for hp in range(2):
        for t in range(2):
            for rt in range(2):
                n = (hp*2+t)*2+rt; d = 104 + 4*n
                h0 = AC + ((2*hp*2+t)*2+rt)*4; h1 = AC + (((2*hp+1)*2+t)*2+rt)*4
                for x in (cv(d, h0, h0+1), cv(d+1, h1, h1+1), cv(d+2, h0+2, h0+3), cv(d+3, h1+2, h1+3)): a(x)
                a(f"global_store_dwordx4 v1, {vr(d,4)}, s[32:33] offset:{1024*n-4096} sc1")
    a(f"s_lshl_b32 s27, s40, 6\ns_lshl_b32 s28, s26, 2\ns_add_u32 s27, s27, s28")
    set_flag(a, "s27")
    a(f"""
    s_mov_b32 s40, s41
    s_cmp_lt_u32 s40, 64
    s_cbranch_scc1 HB_vo
    """)
    K.stamp(6)
    MA, UA, WT_, VB, PXR, PMR, OA = 8, 36, 68, 84, 116, 148, 8
    RB = XI
    a(f"""
    s_mov_b32 s40, s29
    v_lshlrev_b32 v7, 3, v0
    s_lshl_b32 s27, s3, 12
    s_add_u32 s27, s27, {RB}
    v_add_u32 v168, s27, v1
    s_lshl_b32 s27, s3, 11
    s_add_u32 s27, s27, {RB}
    v_add_u32 v169, s27, v1
    v_and_b32 v2, 15, v0
    v_lshrrev_b32 v3, 4, v0
    v_mul_u32_u24 v170, 1792, v2
    v_lshl_add_u32 v170, v3, 4, v170
    s_mul_i32 s27, s3, {16*1792}
    s_lshl_b32 s28, s26, 6
    s_add_u32 s27, s27, s28
    s_add_u32 s27, s27, 896
    v_add_u32 v170, s27, v170
    HB_out:
    s_mul_i32 s27, s40, 14
    s_add_u32 s27, s27, s26
    s_lshl_b32 s27, s27, 15
    s_lshl_b32 s28, s3, 13
    s_add_u32 s27, s27, s28
    s_add_u32 s27, s27, {VO + 4096}
    """)
    add64(a, 32, 12, "s27")
    a(f"s_mul_i32 s27, s40, 7168\ns_add_u32 s27, s27, {MY + 3072}")
    add64(a, 30, 12, "s27")
    a(f"""
    s_lshl_b32 s27, s40, 4
    s_lshl_b32 s28, s3, 2
    s_add_u32 s27, s27, s28
    s_lshl_b32 s28, s27, 2
    s_add_u32 s28, s28, {F_PX}
    v_mov_b32 v171, s28
    s_mul_i32 s27, s27, 3072
    s_add_u32 s27, s27, {PX + 3072}
    """)
    add64(a, 34, 12, "s27"); add64(a, 36, 34, 6144)
    a(f"s_mul_i32 s27, s40, {32*1792}")
    add64(a, 38, 14, "s27")
    for i in range(8): a(f"global_load_dwordx4 {vr(VB+4*i,4)}, v1, s[32:33] offset:{1024*i-4096} sc1")
    for i in range(16): a(f"v_mov_b64 {vr(UA+2*i,2)}, 0")
    a(f"s_mov_b32 s41, {SPIN}\nHB_pm:")
    for j in range(7): a(f"global_load_dwordx4 {vr(MA+4*j,4)}, v1, s[30:31] offset:{1024*j-3072} sc1")
    K.bails.add(6)
    a("s_sub_u32 s41, s41, 1\ns_cbranch_scc1 BAIL_6\ns_waitcnt vmcnt(0)")
    full_check(a, range(MA, MA+28), "v2")
    a("s_cbranch_vccz HB_pm_ok\ns_sleep 8\ns_branch HB_pm\nHB_pm_ok:")
    u_phase(a, MA, UA, WT_, "v5")
    for n in range(4):
        b = VB + 8*n
        for x, y in ((1, 2), (2, 4), (3, 6), (5, 6)): a(f"v_swap_b32 v{b+x}, v{b+y}")
    for t in range(2):
        for hp in range(2):
            d = WT_ + 8*t + 4*hp
            h0 = UA + (4*hp+t)*4; h1 = UA + (4*hp+2+t)*4
            for x in (cv(d, h0, h0+1), cv(d+1, h0+2, h0+3), cv(d+2, h1, h1+1), cv(d+3, h1+2, h1+3)): a(x)
    a(f"""
    HB_pf:
    global_load_dwordx4 v[160:163], v171, s[18:19] sc1
    s_sub_u32 s41, s41, 1
    s_cbranch_scc1 BAIL_6
    s_waitcnt vmcnt(0)
    v_and_b32 v2, v160, v161
    v_and_b32 v3, v162, v163
    v_and_b32 v2, v2, v3
    v_cmp_eq_u32 vcc, 0, v2
    s_cbranch_vccz HB_pf_ok
    s_sleep 4
    s_branch HB_pf
    HB_pf_ok:
    """)
    for hl in range(4):
        for rt in range(2):
            base = "s[34:35]" if hl < 2 else "s[36:37]"
            of = ((hl & 1)*2 + rt)*1536 - 3072
            a(f"global_load_dwordx4 {vr(PXR+(hl*2+rt)*4,4)}, v1, {base} offset:{of} sc1")
            a(f"global_load_dwordx2 {vr(PMR+((hl>>1)*2+rt)*4+2*(hl&1),2)}, v7, {base} offset:{of+1024} sc1")
    for hp in range(2):
        a(f"s_waitcnt vmcnt({8 if hp == 0 else 0})")
        for hh in range(2):
            for t in range(2):
                for rt in range(2):
                    d = vr(OA + (rt*2+t)*4, 4)
                    a(mf(d, vr(VB+(hp*2+t)*8+4*hh, 4), vr(PXR+((2*hp+hh)*2+rt)*4, 4), d if (hp or hh) else 0))
        for t in range(2):
            for rt in range(2):
                d = vr(OA + (rt*2+t)*4, 4)
                a(mf(d, vr(WT_+8*t+4*hp, 4), vr(PMR+(hp*2+rt)*4, 4), d))
    for n in range(4): a(f"ds_write_b128 v168, {vr(OA+4*n,4)} offset:{1024*n}")
    a("s_waitcnt lgkmcnt(0)\ns_barrier\ns_cmp_ge_u32 s3, 2\ns_cbranch_scc1 HB_ost")
    for w in range(4):
        for t in range(2): a(f"ds_read_b128 {vr(8+(w*2+t)*4,4)}, v169 offset:{4096*w+1024*t}")
    for w in range(1, 4):
        a(f"s_waitcnt lgkmcnt({6-2*w})")
        for i in range(4): a(f"v_pk_add_f32 {vr(8+2*i,2)}, {vr(8+2*i,2)}, {vr(8+8*w+2*i,2)}")
    for i in range(4): a(cv(16+i, 8+2*i, 9+2*i))
    a(f"""
    global_store_dwordx4 v170, v[16:19], s[38:39]
    HB_ost:
    s_barrier
    s_add_u32 s40, s40, {NQ}
    s_cmp_lt_u32 s40, 64
    s_cbranch_scc1 HB_out
    """)
    K.stamp(7)
    a("s_endpgm")
    a("HA_start:")
    v6setup()
    xdma(a, 0, "s40")
    RB = 65536
    a(f"""
    v_and_b32 v2, 15, v0                 ; key/row
    v_lshrrev_b32 v3, 4, v0              ; g
    s_mul_i32 s27, s3, 14
    v_lshl_add_u32 v8, v3, 1, s27        ; ci
    v_lshrrev_b32 v9, 2, v8
    v_and_b32 v8, 3, v8
    v_lshlrev_b32 v5, 11, v9
    v_lshl_add_u32 v5, v8, 8, v5
    v_lshl_add_u32 v5, v2, 4, v5
    s_mul_i32 s27, s3, 28
    s_add_u32 s27, s27, 16
    v_mul_u32_u24 v10, 3, v3
    v_add_u32 v10, s27, v10              ; c4
    """)
    for e, d in enumerate((7, 116, 117)):
        a(f"""
        v_add_u32 v8, {e}, v10
        v_lshrrev_b32 v9, 3, v8
        v_lshlrev_b32 v{d}, 11, v9
        v_bfe_u32 v9, v8, 1, 2
        v_lshl_add_u32 v{d}, v9, 8, v{d}
        v_and_b32 v9, 1, v8
        v_lshl_add_u32 v{d}, v9, 3, v{d}
        v_lshl_add_u32 v{d}, v2, 4, v{d}
        """)
    a(f"""
    v_and_b32 v8, 7, v2
    v_mul_u32_u24 v8, 896, v8
    s_mul_i32 s27, s3, 224
    v_add_u32 v8, s27, v8
    v_lshl_add_u32 v118, v3, 5, v8
    v_mul_u32_u24 v9, 24, v3
    v_add3_u32 v119, v8, v9, 64
    v_add_u32 v119, 64, v119
    s_mul_i32 s27, s3, 6144
    s_add_u32 s27, s27, {RB}
    v_add_u32 v4, s27, v1
    s_lshl_b32 s27, s3, 4
    v_lshlrev_b32 v3, 2, v3
    v_sub_u32 v0, v2, v3
    v_add_u32 v0, s27, v0
    s_mov_b32 s42, 0
    s_mov_b32 s45, {f32(-1e30)}
    s_waitcnt vmcnt(0)
    s_barrier
    HA_job:
    s_add_u32 s41, s40, {NQ}
    s_xor_b32 s43, s42, 32768
    s_cmp_ge_u32 s41, 64
    s_cbranch_scc1 HA_nodma
    """)
    xdma(a, "s43", "s41")
    a("HA_nodma:\nv_add_u32 v2, s42, v1")
    QA, XB = 8, 64
    def rdx(kk):
        b = XB + 8*(kk & 1)
        a(f"ds_read_b128 {vr(b,4)}, v2 offset:{kk*2048}\nds_read_b128 {vr(b+4,4)}, v2 offset:{kk*2048+1024}")
    rdx(0); rdx(1)
    for kk in range(14):
        b = XB + 8*(kk & 1)
        a(f"s_waitcnt lgkmcnt({2 if kk < 13 else 0})")
        for t in range(7):
            for rt in range(2):
                d = vr(QA + (rt*7+t)*4, 4)
                a(mf(d, wA((t*14+kk)*4), vr(b+4*rt,4), d if kk else 0))
        if kk + 2 < 14: rdx(kk+2)
    QO = 64
    for rt in range(2):
        q = QA + rt*28; d = QO + 14*rt
        for p in range(3):
            t0 = q + 8*p; t1 = t0 + 4
            for x in (cv(d+4*p, t0, t0+1), cv(d+4*p+1, t1, t1+1), cv(d+4*p+2, t0+2, t0+3), cv(d+4*p+3, t1+2, t1+3)): a(x)
        a(cv(d+12, q+24, q+25)); a(cv(d+13, q+26, q+27))
    HO = 8
    a(f"s_mul_i32 s27, s40, 7168\ns_add_u32 s27, s27, {NY}")
    add64(a, 30, 12, "s27")
    a(f"s_mov_b32 s44, {SPIN}")
    def ldm():
        m = HO + 32
        a(f"""
        global_load_dwordx4 {vr(m,4)}, v118, s[30:31] sc1
        global_load_dwordx4 {vr(m+4,4)}, v118, s[30:31] offset:16 sc1
        global_load_dwordx4 {vr(m+8,4)}, v119, s[30:31] sc1
        global_load_dwordx2 {vr(m+12,2)}, v119, s[30:31] offset:16 sc1
        """)
    ldm()
    a("v_add_u32 v2, s42, v5\nv_add_u32 v3, s42, v7\nv_add_u32 v62, s42, v116\nv_add_u32 v63, s42, v117")
    for kt in range(2):
        h = HO + 16*kt
        a(f"""
        ds_read_b128 {vr(h,4)}, v2 offset:{1024*kt}
        ds_read_b128 {vr(h+4,4)}, v2 offset:{1024*kt+256}
        ds_read_b64 {vr(h+8,2)}, v3 offset:{1024*kt}
        ds_read_b64 {vr(h+10,2)}, v62 offset:{1024*kt}
        ds_read_b64 {vr(h+12,2)}, v63 offset:{1024*kt}
        """)
    SA = 92
    def stile(kt):
        h = HO + 16*kt
        for p in range(3):
            for rt in range(2):
                d = vr(SA + (rt*3+kt)*4, 4)
                a(mf(d, vr(h+4*p,4), vr(QO+14*rt+4*p,4), d if p else 0))
        for rt in range(2):
            d = vr(SA + (rt*3+kt)*4, 4)
            a(f"v_mfma_f32_16x16x16_bf16 {d}, {vr(h+12,2)}, {vr(QO+14*rt+12,2)}, {d}")
    a("s_waitcnt lgkmcnt(5)"); stile(0)
    a("s_waitcnt lgkmcnt(0)"); stile(1)
    K.bails.add(7)
    a("HA_pm:\ns_waitcnt vmcnt(0)")
    full_check(a, range(HO+32, HO+46), "v2")
    a("s_cbranch_vccz HA_pm_ok\ns_sleep 8")
    ldm()
    a("s_sub_u32 s44, s44, 1\ns_cbranch_scc1 BAIL_7\ns_branch HA_pm\nHA_pm_ok:")
    stile(2)
    for n in range(6): a(f"ds_write_b128 v4, {vr(SA+4*n,4)} offset:{1024*n}")
    a(f"""
    s_lshl_b32 s27, s40, 4
    s_add_u32 s27, s27, s26
    s_lshl_b32 s46, s27, 2
    s_add_u32 s46, s46, {F_PX}
    s_lshl_b32 s27, s27, 1
    s_add_u32 s27, s27, s3
    s_mul_i32 s27, s27, 1536
    s_add_u32 s27, s27, {PX}
    """)
    add64(a, 32, 12, "s27")
    a(f"""
    s_mul_i32 s27, s3, 3072
    s_add_u32 s27, s27, {RB}
    v_add_u32 v2, s27, v1
    s_waitcnt lgkmcnt(0)
    s_barrier
    s_cmp_ge_u32 s3, 2
    s_cbranch_scc1 HA_sm_done
    """)
    for w in range(4):
        for kt in range(3): a(f"ds_read_b128 {vr(8+(w*3+kt)*4,4)}, v2 offset:{6144*w+1024*kt}")
    for w in range(1, 4):
        a(f"s_waitcnt lgkmcnt({9-3*w})")
        for i in range(6): a(f"v_pk_add_f32 {vr(8+2*i,2)}, {vr(8+2*i,2)}, {vr(8+12*w+2*i,2)}")
    a("v_mov_b32 v3, s45")
    for i in range(8):
        a(f"v_cmp_le_i32 vcc, {(i & 3) + 16*(i >> 2)}, v0\nv_cndmask_b32 v{8+i}, v3, v{8+i}, vcc")
    a("v_max3_f32 v2, v8, v9, v10")
    for i in range(11, 19, 2): a(f"v_max3_f32 v2, v2, v{i}, v{i+1}")
    a("v_max_f32 v2, v2, v19")
    def xred(op):
        for sw in ("v_permlane32_swap_b32", "v_permlane16_swap_b32"):
            a(f"v_mov_b32 v3, v2\n{sw} v2, v3\n{op} v2, v2, v3")
    xred("v_max_f32")
    for i in range(8, 20): a(f"v_sub_f32 v{i}, v{i}, v2")
    for i in range(8, 20): a(f"v_exp_f32 v{i}, v{i}")
    a("v_add_f32 v2, v16, v17\nv_add_f32 v3, v18, v19\nv_add_f32 v2, v2, v3\nv_mul_f32 v2, 0.5, v2")
    for i in range(8, 16): a(f"v_add_f32 v2, v2, v{i}")
    xred("v_add_f32")
    a("v_rcp_f32 v2, v2")
    for i in range(8, 20): a(f"v_mul_f32 v{i}, v{i}, v2")
    for i in range(6): a(cv(20+i, 8+2*i, 9+2*i))
    a("""
    v_lshrrev_b32 v3, 1, v1
    global_store_dwordx4 v1, v[20:23], s[32:33] sc1
    global_store_dwordx2 v3, v[24:25], s[32:33] offset:1024 sc1
    HA_sm_done:
    """)
    set_flag(a, "s46")
    a(f"""
    s_mov_b32 s40, s41
    s_mov_b32 s42, s43
    s_cmp_lt_u32 s40, 64
    s_cbranch_scc1 HA_job
    """)
    K.stamp(8)
    a("s_endpgm")
```

```python
import re, struct
TRANS = ("v_exp_f32","v_log_f32","v_rcp_f32","v_rsq_f32","v_sqrt_f32","v_sin_f32","v_cos_f32")
def f32(x): return struct.unpack("<I", struct.pack("<f", float(x)))[0]
def regs_of(op):
    op = op.strip()
    for pre in ("neg(", "abs("):
        if op.startswith(pre): op = op[len(pre):-1]
    op = op.lstrip("-").strip("|")
    m = re.fullmatch(r"([vas])\[(\d+):(\d+)\]", op)
    if m: return {(m.group(1), i) for i in range(int(m.group(2)), int(m.group(3)) + 1)}
    m = re.fullmatch(r"([vas])(\d+)", op)
    if m: return {(m.group(1), int(m.group(2)))}
    if op == "vcc": return {("s", "vcc")}
    if op == "m0": return {("s", "m0")}
    if op == "exec": return {("s", "exec")}
    return set()
class Ins:
    def __init__(self, text):
        self.text = text
        t = text.split(";")[0].strip()
        p = t.split(None, 1)
        self.mn = p[0]
        rest = p[1] if len(p) > 1 else ""
        ops = [o.strip() for o in rest.split(",")] if rest else []
        mods = ""
        if ops:
            last = ops[-1].split(None, 1)
            ops[-1] = last[0]
            mods = last[1] if len(last) > 1 else ""
        self.ops, self.mods = ops, mods
        mn = self.mn
        self.mfma = mn.startswith("v_mfma") or mn.startswith("v_smfmac")
        self.valu = mn.startswith("v_") and not self.mfma
        self.vmem = mn.startswith("global_") or mn.startswith("buffer_")
        self.ds = mn.startswith("ds_")
        self.salu = mn.startswith("s_")
        self.trans = mn.replace("_e32", "").replace("_e64", "") in TRANS
        self.dpp = ("row_" in mods or "quad_perm" in mods or "_dpp" in mn)
        self.perml = mn.startswith("v_permlane")
        self.rdl = mn.startswith("v_readfirstlane") or mn.startswith("v_readlane")
        R = [regs_of(o) for o in ops]
        self.w, self.r, self.c = set(), set(), set()
        self.passes = 0; self.wide = False; self.dma = False
        U = lambda l: set().union(*l) if l else set()
        if self.mfma:
            self.passes = 8 if "32x32" in mn else 4
            self.w = R[0]
            if mn.startswith("v_smfmac"): self.c = R[0]; self.r = R[1] | R[2] | R[3]
            else: self.c = R[3]; self.r = R[1] | R[2]
        elif self.valu:
            if mn.startswith("v_swap") or self.perml: self.w = U(R); self.r = U(R)
            else:
                self.w = R[0]; self.r = U(R[1:])
                if mn.startswith("v_fmac") or self.dpp: self.r |= R[0]
                if mn.startswith("v_cndmask") and len(ops) == 3: self.r |= {("s", "vcc")}
            if mn == "v_nop": self.w = set()
        elif self.vmem:
            self.dma = "_lds_" in mn or " lds" in (" " + mods)
            if "store" in mn:
                self.r = U(R); self.wide = mn.endswith("x4") or mn.endswith("x3")
                self.data = R[1] if mn.startswith("global_") else R[0]
            elif self.dma or mn in ("buffer_wbl2", "buffer_inv"): self.r = U(R)
            elif "atomic" in mn and "sc0" not in mods: self.r = U(R)
            else: self.w = R[0]; self.r = U(R[1:])
        elif self.ds:
            if "read" in mn or "permute" in mn or "swizzle" in mn or "_rtn" in mn: self.w = R[0]; self.r = U(R[1:])
            else: self.r = U(R)
        elif self.salu:
            if mn.startswith("s_cmp") or mn.startswith("s_cbranch") or mn in ("s_branch", "s_waitcnt", "s_barrier", "s_nop", "s_endpgm", "s_sleep", "s_setprio", "s_bitcmp1_b32", "s_bitcmp0_b32"): self.r = U(R)
            else: self.w = R[0] if R else set(); self.r = U(R[1:])
        self.states = 1
        if mn == "s_nop": self.states = int(ops[0]) + 1
def need(p, c):
    n = 0
    vw = {x for x in p.w if x[0] in "va"}; sw = {x for x in p.w if x[0] == "s"}
    if p.valu:
        if c.mfma and vw & (c.r | c.c): n = max(n, 2)
        if c.valu and (c.dpp or c.perml) and vw & c.r: n = max(n, 2)
        if c.rdl and vw & c.r: n = max(n, 1)
        if p.trans and not c.trans and vw & c.r: n = max(n, 1)
        if sw & c.r:
            if c.valu: n = max(n, 4 if c.mn.startswith("v_readlane") or c.mn.startswith("v_writelane") else 2)
            if c.vmem: n = max(n, 5)
    if p.mfma:
        big = p.passes == 8
        if c.mfma:
            if p.w & c.r: n = max(n, 12 if big else 8)
            if p.w & c.c and not (p.w == c.c and p.passes == c.passes): n = max(n, 10 if big else 6)
            if p.w & c.w and not (p.w & c.c): n = max(n, 10 if big else 6)
        elif (c.valu or c.vmem or c.ds) and p.w & (c.r | c.w): n = max(n, 12 if big else 8)
        if c.valu and p.c & c.w: n = max(n, 7 if big else 3)
    if p.vmem and p.wide and p.data & c.w: n = max(n, 2 if c.valu else 1)
    if p.salu and ("s", "m0") in p.w and c.dma: n = max(n, 1)
    return n
class Asm:
    def __init__(self):
        self.out = []; self.hist = []; self.nops = 0; self.lab = 0
    def raw(self, s): self.out.append(s)
    def label(self, name, reset=False):
        self.out.append(name + ":")
    def newlab(self, p="L"):
        self.lab += 1; return f"{p}_{self.lab}"
    def __call__(self, text):
        for line in text.strip().split("\n"):
            line = line.strip()
            if not line or line.startswith(";"): continue
            if line.endswith(":"): self.label(line[:-1]); continue
            ins = Ins(line)
            dist = 0; pad = 0
            for p in reversed(self.hist):
                k = need(p, ins) - dist
                if k > pad: pad = k
                dist += p.states
                if dist >= 12: break
            if pad:
                self.nops += pad
                nop = Ins(f"s_nop {pad-1}"); self.hist.append(nop); self.out.append(f"    s_nop {pad-1}")
            self.hist.append(ins); self.hist = self.hist[-16:]
            self.out.append("    " + line)
    def fence(self, n=12):
        self(f"s_nop {n-1}")
    def text(self): return "\n".join(self.out) + "\n"
def vr(b, n=1): return f"v{b}" if n == 1 else f"v[{b}:{b+n-1}]"
def ar(b, n=1): return f"a{b}" if n == 1 else f"a[{b}:{b+n-1}]"
def sr(b, n=1): return f"s{b}" if n == 1 else f"s[{b}:{b+n-1}]"
def kernel_desc(name, vgpr=512, acc=256, sgpr=96):
    return f""".amdhsa_kernel {name}
  .amdhsa_next_free_vgpr {vgpr}
  .amdhsa_next_free_sgpr {sgpr}
  .amdhsa_accum_offset {acc}
  .amdhsa_group_segment_fixed_size 0
  .amdhsa_kernarg_size 104
  .amdhsa_user_sgpr_count 2
  .amdhsa_user_sgpr_kernarg_segment_ptr 1
  .amdhsa_system_sgpr_workgroup_id_x 1
.end_amdhsa_kernel
"""
```

```python
from emit import *
from layout import *
from k1 import add64
R448 = f32(1.0/448)
def H(x): return hex(f32(x))
def gen_fft(K):
    a = K.a
    a.label("ROLE_FFT")
    a("""
    v_and_b32 v4, 15, v0
    v_lshrrev_b32 v5, 4, v0
    v_cvt_f32_u32 v6, v4          ; n
    v_cvt_f32_u32 v7, v5          ; g
    """)
    a.label("P1_loop")
    K.claim(C_Q1, "s26")
    a("""
    s_cmp_ge_u32 s26, 96
    s_cbranch_scc1 P2_start
    s_cmp_ge_u32 s26, 64
    s_cbranch_scc1 P1_wt
    s_and_b32 s27, s26, 1
    s_lshl_b32 s27, s27, 2
    s_add_u32 s27, s27, s3        ; cg
    s_lshr_b32 s28, s26, 1
    """)
    a(f"""
    v_mul_u32_u24 v8, {64*896}, v4
    v_lshl_add_u32 v8, v5, 4, v8
    s_mul_i32 s29, s28, {2*896}
    v_add_u32 v8, s29, v8
    """)
    for u in range(4):
        a(f"v_add_u32 v9, {(u >> 1)*896 + (u & 1)*1024*896}, v8")
        for kk in range(14): a(f"global_load_dwordx4 {vr(32+56*u+4*kk,4)}, v9, s[4:5] offset:{64*kk}")
    for tt in range(2):
        a(f"""
        s_lshl_b32 s29, s27, 5
        s_add_u32 s29, s29, {16*tt}
        v_add_u32 v8, s29, v4
        v_cvt_f32_u32 v8, v8
        v_mul_f32 v8, {hex(R448)}, v8      ; step = k/448
        v_mul_f32 v9, 0x41000000, v7
        v_mul_f32 v9, v9, v8               ; base = 8g*k/448
        """)
        for kk in range(14):
            for xp in range(4):
                d = 32*kk + 2*xp
                a(f"""
                v_fmamk_f32 v10, v8, {H(d)}, v9
                v_fmamk_f32 v11, v8, {H(d+1)}, v9
                v_cos_f32 v12, v10
                v_cos_f32 v13, v11
                v_sin_f32 v14, v10
                v_sin_f32 v15, v11
                v_cvt_pk_bf16_f32 v12, v12, v13
                v_cvt_pk_bf16_f32 v14, -v14, -v15
                v_accvgpr_write_b32 a{(tt*2)*56+kk*4+xp}, v12
                v_accvgpr_write_b32 a{(tt*2+1)*56+kk*4+xp}, v14
                """)
    a(f"""
    s_lshr_b32 s29, s28, 3                 ; bt
    s_lshl_b32 s29, s29, 19                ; bt*2*4*16*4096
    s_and_b32 s30, s28, 7
    s_lshl_b32 s30, s30, 13                ; (2rb&15)*4096
    s_add_u32 s29, s29, s30
    s_lshl_b32 s30, s27, 9
    s_add_u32 s29, s29, s30
    s_add_u32 s29, s29, {XT}
    v_lshlrev_b32 v8, 16, v5
    v_lshl_add_u32 v8, v4, 4, v8
    v_add_u32 v8, s29, v8
    """)
    for u in range(4):
        a(f"s_waitcnt vmcnt({14*(3-u) + 2*u})")
        for kk in range(14):
            for q in range(4):
                d = vr(16+4*q, 4)
                a(f"v_mfma_f32_16x16x32_bf16 {d}, {vr(32+56*u+4*kk,4)}, {ar(q*56+kk*4,4)}, {d if kk else 0}")
        a(f"v_add_u32 v9, {(u >> 1)*4096 + (u & 1)*262144}, v8")
        for tt in range(2):
            o = 32 + 56*u + 4*tt
            for i in range(4): a(f"v_cvt_pk_bf16_f32 v{o+i}, v{16+8*tt+2*i}, v{17+8*tt+2*i}")
            a(f"global_store_dwordx4 v9, {vr(o,4)}, s[12:13] offset:{256*tt} sc1")
    K.signal(C_D1)
    a("s_branch P1_loop")
    a.label("P1_wt")
    a(f"""
    s_sub_u32 s26, s26, 64
    s_lshr_b32 s27, s26, 1                 ; f2t*4+g
    s_and_b32 s28, s26, 1                  ; f1t
    s_lshl_b32 s29, s27, 7                 ; 32*4*(..)
    s_lshl_b32 s30, s28, 4
    s_add_u32 s29, s29, s30                ; f0
    v_add_u32 v8, s29, v4
    v_mul_u32_u24 v8, 450, v8
    s_lshl_b32 s30, s3, 2
    v_add_u32 v9, s30, v5                  ; cq
    s_lshr_b32 s30, s27, 2
    s_lshl_b32 s30, s30, 1
    s_add_u32 s30, s30, s28
    s_lshl_b32 s30, s30, 10                ; (f2t*2+f1t)*1024
    s_and_b32 s31, s27, 3
    s_lshl_b32 s31, s31, 8
    s_add_u32 s30, s30, s31
    s_add_u32 s30, s30, {WT}
    v_lshlrev_b32 v10, 4, v4
    v_add_u32 v10, s30, v10
    s_mov_b32 s31, 3
    WT_loop:
    """)
    for it in range(5):
        a(f"v_add_u32 v11, {16*it}, v9\nv_min_u32 v11, 224, v11\nv_lshl_add_u32 v11, v11, 1, v8")
        for r in range(4):
            if r: a(f"v_add_u32 v11, {32*450}, v11")
            a(f"global_load_ushort v{32+8*it+r}, v11, s[6:7]\nglobal_load_ushort v{36+8*it+r}, v11, s[8:9]")
    a("s_waitcnt vmcnt(0)")
    for it in range(5):
        a(f"v_add_u32 v11, {16*it}, v9\nv_cmp_gt_u32 vcc, 225, v11")
        for r in range(4):
            a(f"v_lshl_or_b32 v{32+8*it+r}, v{36+8*it+r}, 16, v{32+8*it+r}")
        for r in range(4):
            a(f"v_cndmask_b32 v{32+8*it+r}, 0, v{32+8*it+r}, vcc")
        a(f"""
        v_lshl_add_u32 v12, v11, 13, v10
        v_cmp_gt_u32 vcc, 228, v11
        s_and_b64 exec, exec, vcc
        global_store_dwordx4 v12, {vr(32+8*it,4)}, s[12:13] sc1
        s_mov_b64 exec, -1
        """)
    a("""
    v_add_u32 v9, 80, v9
    s_sub_u32 s31, s31, 1
    s_cmp_lg_u32 s31, 0
    s_cbranch_scc1 WT_loop
    """)
    K.signal(C_D1)
    a("s_branch P1_loop")
    a.label("P2_start")
    K.stamp(1)
    a("s_mov_b32 s27, 0")
    a.label("P2_loop")
    K.claim(C_Q2, "s26")
    a("""
    s_cmp_ge_u32 s26, 57
    s_cbranch_scc1 P3_loop
    s_cmp_lg_u32 s27, 0
    s_cbranch_scc1 P2_go
    s_mov_b32 s27, 1
    """)
    C64 = lambda t, u: (t*4+u)*6
    C32 = lambda t, u: 96 + (t*2+u)*6
    for N, nt, Cf in ((64, 4, C64), (32, 2, C32)):
        for t in range(nt):
            a(f"""
            v_add_f32 v8, {H(16*t)}, v6
            v_mul_f32 v8, {H(1.0/N)}, v8
            v_mul_f32 v9, 4.0, v7
            v_mul_f32 v9, v9, v8
            """)
            for u in range(nt):
                for r in range(4): a(f"v_fmamk_f32 v{10+r}, v8, {H(16*u+r)}, v9")
                for r in range(4): a(f"v_cos_f32 v{16+r}, v{10+r}")
                for r in range(4): a(f"v_sin_f32 v{20+r}, v{10+r}")
                a("""
                v_cvt_pk_bf16_f32 v12, v16, v17
                v_cvt_pk_bf16_f32 v13, v18, v19
                v_cvt_pk_bf16_f32 v10, -v20, -v21
                v_cvt_pk_bf16_f32 v11, -v22, -v23
                v_cvt_pk_bf16_f32 v14, v20, v21
                v_cvt_pk_bf16_f32 v15, v22, v23
                """)
                for i in range(6): a(f"v_accvgpr_write_b32 a{Cf(t,u)+i}, v{10+i}")
    K.wait_cnt(C_D1, 96, 1)
    a.label("P2_go")
    Fre = lambda b: ar(b+2, 4)
    Fim = lambda b: ar(b, 4)
    XO = 32; WR = 64; ACC = 96; OP = 160
    a(f"""
    s_lshl_b32 s28, s26, 2
    s_add_u32 s28, s28, s3                 ; col
    s_lshl_b32 s29, s28, 4
    s_add_u32 s29, s29, {XT}
    v_lshlrev_b32 v8, 12, v0
    v_add_u32 v8, s29, v8
    s_lshl_b32 s29, s28, 13
    s_add_u32 s29, s29, {WT + 4096}
    v_add_u32 v9, s29, v1
    """)
    for i in range(8):
        a(f"global_load_dwordx4 {vr(XO+4*i,4)}, v8, s[12:13] sc1")
        if i < 7: a("v_add_u32 v8, 0x40000, v8")
    for i in range(8): a(f"global_load_dwordx4 {vr(WR+4*i,4)}, v9, s[12:13] offset:{1024*i-4096} sc1")
    a("s_waitcnt vmcnt(8)")
    acc = lambda i, p: ACC + (i*2+p)*4
    for bt in range(4):
        for f1t in range(2):
            for p in range(2):
                for ks in range(2):
                    d = vr(acc(bt*2+f1t, p), 4)
                    a(f"v_mfma_f32_16x16x32_bf16 {d}, {vr(XO+(bt*2+ks)*4,4)}, {(Fre if p == 0 else Fim)(C32(f1t,ks))}, {d if ks else 0}")
    def twiddle(ntl, nti, lane_major, conj):
        for tl in range(ntl):
            a(f"""
            v_add_f32 v8, {H(16*tl)}, v6
            v_mul_f32 v8, {H(1.0/2048)}, v8
            v_mul_f32 v9, 4.0, v7
            v_mul_f32 v9, v9, v8
            """)
            for ti in range(nti):
                i = ti*ntl + tl
                re, im = acc(i, 0), acc(i, 1)
                for r in range(4): a(f"v_fmamk_f32 v{10+r}, v8, {H(16*ti+r)}, v9")
                for r in range(4): a(f"v_cos_f32 v{16+r}, v{10+r}")
                for r in range(4): a(f"v_sin_f32 v{20+r}, v{10+r}")
                for r in range(4): a(f"v_mul_f32 v{24+r}, v{re+r}, v{16+r}\nv_mul_f32 v{28+r}, v{im+r}, v{16+r}")
                s1, s2 = ("-", "") if conj else ("", "-")
                for r in range(4): a(f"v_fma_f32 v{24+r}, {s1}v{im+r}, v{20+r}, v{24+r}\nv_fma_f32 v{28+r}, {s2}v{re+r}, v{20+r}, v{28+r}")
                x, y = (28, 24) if conj else (24, 28)
                o = OP + 4*i
                a(f"v_cvt_pk_bf16_f32 v{o}, v{x}, v{x+1}\nv_cvt_pk_bf16_f32 v{o+1}, v{x+2}, v{x+3}\nv_cvt_pk_bf16_f32 v{o+2}, v{y}, v{y+1}\nv_cvt_pk_bf16_f32 v{o+3}, v{y+2}, v{y+3}")
    twiddle(2, 4, None, False)
    for f2t in range(4):
        for f1t in range(2):
            for p in range(2):
                for bt in range(4):
                    d = vr(acc(f2t*2+f1t, p), 4)
                    a(f"v_mfma_f32_16x16x32_bf16 {d}, {(Fre if p == 0 else Fim)(C64(f2t,bt))}, {vr(OP+(bt*2+f1t)*4,4)}, {d if bt else 0}")
    a("s_waitcnt vmcnt(0)\ns_mov_b32 s29, 0xffff0000")
    for i in range(8):
        re, im = acc(i, 0), acc(i, 1)
        for r in range(4): a(f"v_lshlrev_b32 v{16+r}, 16, v{WR+4*i+r}\nv_and_b32 v{20+r}, s29, v{WR+4*i+r}")
        for r in range(4): a(f"v_mul_f32 v{24+r}, v{re+r}, v{16+r}\nv_mul_f32 v{28+r}, v{im+r}, v{16+r}")
        for r in range(4): a(f"v_fma_f32 v{24+r}, -v{im+r}, v{20+r}, v{24+r}\nv_fma_f32 v{28+r}, v{re+r}, v{20+r}, v{28+r}")
        o = XO + 4*i
        a(f"v_cvt_pk_bf16_f32 v{o}, v28, v29\nv_cvt_pk_bf16_f32 v{o+1}, v30, v31\nv_cvt_pk_bf16_f32 v{o+2}, v24, v25\nv_cvt_pk_bf16_f32 v{o+3}, v26, v27")
    for f1t in range(2):
        for bt in range(4):
            for p in range(2):
                for f2t in range(4):
                    d = vr(acc(f1t*4+bt, p), 4)
                    a(f"v_mfma_f32_16x16x32_bf16 {d}, {vr(XO+(f2t*2+f1t)*4,4)}, {(Fim if p == 0 else Fre)(C64(bt,f2t))}, {d if f2t else 0}")
    twiddle(4, 2, None, True)
    for bt in range(4):
        for at in range(2):
            for p in range(2):
                for f1t in range(2):
                    d = vr(acc(bt*2+at, p), 4)
                    a(f"v_mfma_f32_16x16x32_bf16 {d}, {vr(OP+(f1t*4+bt)*4,4)}, {(Fim if p == 0 else Fre)(C32(at,f1t))}, {d if f1t else 0}")
    a(f"""
    v_mul_u32_u24 v8, 272, v4
    v_lshl_add_u32 v8, v5, 4, v8
    s_mul_i32 s29, s3, 8704
    v_add_u32 v8, s29, v8
    """)
    for bt in range(4):
        for at in range(2):
            i = bt*2 + at; o = XO + 4*i
            for r in range(4): a(f"v_cvt_pk_bf16_f32 v{o+r}, v{acc(i,0)+r}, v{acc(i,1)+r}")
            a(f"ds_write_b128 v8, {vr(o,4)} offset:{at*16*272 + bt*64}")
    a(f"""
    s_mul_i32 s29, s3, 272
    v_lshlrev_b32 v8, 2, v0
    v_add_u32 v8, s29, v8
    s_lshl_b32 s29, s26, 15
    s_lshl_b32 s30, s3, 10
    s_add_u32 s29, s29, s30
    s_add_u32 s29, s29, {ZT}
    v_add_u32 v9, s29, v1
    s_waitcnt lgkmcnt(0)
    s_barrier
    """)
    for i in range(8):
        for w in range(4): a(f"ds_read_b32 v{WR+4*i+w}, v8 offset:{w*8704 + i*4*272}")
    for i in range(8):
        a(f"s_waitcnt lgkmcnt({min(15, 4*(7-i))})\nglobal_store_dwordx4 v9, {vr(WR+4*i,4)}, s[12:13] sc1")
        if i < 7: a("v_add_u32 v9, 4096, v9")
    K.signal(C_D2)
    a("s_branch P2_loop")
    a.label("P3_loop")
    K.stamp(2)
    K.claim(C_Q3, "s26")
    a(f"""
    s_cmp_ge_u32 s26, 64
    s_cbranch_scc1 FFT_done
    s_and_b32 s27, s26, 1
    s_lshl_b32 s27, s27, 2
    s_add_u32 s27, s27, s3                 ; dg
    s_lshr_b32 s28, s26, 1                 ; rb
    s_cmp_eq_u32 s27, 7
    s_cbranch_scc1 P3_wait
    v_lshrrev_b32 v8, 2, v4
    v_and_b32 v9, 3, v4
    v_lshl_add_u32 v16, v8, 3, v9
    s_lshl_b32 s29, s27, 6
    v_add_u32 v16, s29, v16                ; d base
    v_cmp_eq_u32 vcc, 0, v5
    v_cndmask_b32 v17, 1.0, 0.5, vcc
    """)
    for mt in range(4):
        a(f"""
        v_add_u32 v10, {32*(mt >> 1) + 4*(mt & 1)}, v16
        v_cvt_f32_u32 v8, v10
        v_mul_f32 v8, {hex(R448)}, v8
        v_mul_f32 v9, 4.0, v7
        v_mul_f32 v9, v9, v8
        v_lshlrev_b32 v10, 15, v10
        v_and_b32 v10, 0x8000, v10
        v_or_b32 v10, 0x3f00, v10
        v_cndmask_b32 v10, 0, v10, vcc
        v_accvgpr_write_b32 a{mt*60+56}, v10
        v_accvgpr_write_b32 a{mt*60+57}, 0
        v_accvgpr_write_b32 a{mt*60+58}, 0
        v_accvgpr_write_b32 a{mt*60+59}, 0
        """)
        for ks in range(14):
            for rp in range(2):
                k = 16*ks + 2*rp
                a(f"""
                v_fmamk_f32 v10, v8, {H(k)}, v9
                v_fmamk_f32 v11, v8, {H(k+1)}, v9
                v_cos_f32 v12, v10
                v_sin_f32 v13, v10
                v_cos_f32 v14, v11
                v_sin_f32 v15, v11
                """)
                if k == 0: a("v_mul_f32 v12, v12, v17")
                a(f"""
                v_cvt_pk_bf16_f32 v12, v12, -v13
                v_cvt_pk_bf16_f32 v14, v14, -v15
                v_accvgpr_write_b32 a{mt*60+ks*4+2*rp}, v12
                v_accvgpr_write_b32 a{mt*60+ks*4+2*rp+1}, v14
                """)
    a.label("P3_wait")
    K.wait_cnt(C_D2, 57, 2)
    a(f"""
    s_cmp_eq_u32 s27, 7
    s_cbranch_scc1 P3_loop
    s_lshl_b32 s29, s28, 10
    v_lshlrev_b32 v9, 4, v4
    v_add_u32 v9, s29, v9
    v_lshl_add_u32 v8, v5, 15, v9
    """)
    ZR = lambda rt, ks: 16 + (rt*15 + ks)*4
    for half in range(2):
        add64(a, 30, 12, ZT)
        for ks in range(15):
            for rt in (2*half, 2*half+1):
                a(f"global_load_dwordx4 {vr(ZR(rt,ks),4)}, {'v8' if ks < 14 else 'v9'}, s[30:31] offset:{256*rt} sc1")
            if ks < 14: add64(a, 30, 30, 131072)
    a(f"""
    s_mul_i32 s29, s28, {64*1792}
    s_lshl_b32 s30, s27, 7
    s_add_u32 s29, s29, s30
    v_mul_u32_u24 v8, 1792, v4
    v_lshl_add_u32 v8, v5, 4, v8
    v_add_u32 v8, s29, v8
    s_mov_b32 s30, {H(2.0/(448*2048))}
    """)
    for rt in range(4):
        if rt == 0: a("s_waitcnt vmcnt(30)")
        if rt == 2: a("s_waitcnt vmcnt(4)")
        for ks in range(15):
            for mt in range(4):
                d = ar(240+4*mt, 4)
                a(f"v_mfma_f32_16x16x32_bf16 {d}, {ar(mt*60+ks*4,4)}, {vr(ZR(rt,ks),4)}, {d if ks else 0}")
        t = ZR(rt, 0)
        for i in range(16): a(f"v_accvgpr_read_b32 v{t+i}, a{240+i}")
        for i in range(16): a(f"v_mul_f32 v{t+i}, s30, v{t+i}")
        for i in range(8): a(f"v_cvt_pk_bf16_f32 v{t+16+i}, v{t+2*i}, v{t+2*i+1}")
        a(f"global_store_dwordx4 v8, {vr(t+16,4)}, s[14:15]\nglobal_store_dwordx4 v8, {vr(t+20,4)}, s[14:15] offset:64")
        if rt < 3: a(f"v_add_u32 v8, {16*1792}, v8")
    a("s_branch P3_loop")
    a.label("FFT_done")
    K.stamp(3)
    if K.o.get("fftonly"): a("s_endpgm"); return
    a(f"s_lshl_b32 s23, s22, 7")
    K.claim(C_CNT - 128, "s21", sreg="s23")
    a(f"""
    s_cmp_lt_u32 s21, 30
    s_cbranch_scc1 ROLE_CHAIN
    s_endpgm
    """)
```

```python
from emit import *
from layout import *
import math
SC = (1.0/16.0) * math.log2(math.e)

def add64(a, dst, src, off):
    a(f"s_add_u32 s{dst}, s{src}, {off}\ns_addc_u32 s{dst+1}, s{src+1}, 0")

def gen_k1(a):
    a.raw(".globl pre_kernel\n.p2align 8\n.type pre_kernel,@function\npre_kernel:")
    a("""
    s_load_dwordx4 s[4:7], s[0:1], 40
    s_load_dwordx4 s[8:11], s[0:1], 56
    s_load_dwordx2 s[12:13], s[0:1], 96
    s_load_dwordx2 s[14:15], s[0:1], 32
    s_cmp_ge_u32 s2, 256
    s_cbranch_scc1 K1_end
    v_lshrrev_b32 v1, 6, v0
    v_and_b32 v0, 63, v0
    v_readfirstlane_b32 s3, v1          ; wave
    s_and_b32 s16, s2, 7                ; x
    s_lshr_b32 s17, s2, 3               ; y
    s_cmp_ge_u32 s17, 28
    s_cbranch_scc1 K1_misc
    s_cmp_ge_u32 s17, 14
    s_cselect_b32 s18, 1, 0
    s_lshl_b32 s16, s16, 1
    s_add_u32 s16, s16, s18             ; h
    s_mul_i32 s18, s18, 14
    s_sub_u32 s17, s17, s18             ; y%14
    v_and_b32 v2, 15, v0                ; m / n_l
    v_lshrrev_b32 v3, 4, v0             ; g
    v_lshrrev_b32 v4, 2, v2
    v_and_b32 v5, 3, v2
    v_lshl_add_u32 v6, v4, 3, v5        ; pm
    s_lshl_b32 s19, s16, 9              ; h*512
    s_cmp_ge_u32 s17, 7
    s_cbranch_scc1 K1_B
    """)
    a("""
    s_lshl_b32 s20, s17, 19             ; 64p*8192
    s_add_u32 s20, s20, s19
    s_lshl_b32 s21, s3, 7               ; 2w*64 bytes
    s_add_u32 s20, s20, s21
    v_lshlrev_b32 v7, 13, v6
    v_lshl_add_u32 v7, v3, 4, v7
    v_add_u32 v7, s20, v7
    s_lshl_b32 s21, s3, 13
    s_waitcnt lgkmcnt(0)
    """)
    for ksl in range(2):
        for mt in range(4):
            off = ((mt >> 1)*32 + (mt & 1)*4)*8192 + ksl*64
            a(f"s_add_u32 m0, s21, {(ksl*4+mt)*1024}\nv_add_u32 v8, {off}, v7\nglobal_load_lds_dwordx4 v8, s[4:5]")
    a("""
    v_lshlrev_b32 v8, 4, v4             ; 16g'
    v_mul_u32_u24 v9, 12, v4            ; 12g'
    v_lshrrev_b32 v17, 1, v5
    v_and_b32 v18, 1, v5
    v_lshl_add_u32 v17, v17, 2, v18     ; 4(r>>1)+(r&1)
    s_mul_i32 s22, s3, 112
    v_add_u32 v8, v8, v17
    v_add_u32 v8, s22, v8
    v_add_u32 v18, v9, v5
    v_add_u32 v18, s22, v18             ; 112w+12g+r
    v_add_u32 v9, v9, v17
    v_add_u32 v9, s22, v9
    v_lshlrev_b32 v19, 4, v3
    v_add_u32 v19, s19, v19             ; h*512+16g
    """)
    for t in range(7):
        src, c = (("v8", 8*(t >> 1) + 2*(t & 1)) if t < 4 else (("v9", 64 + 2*(t & 1)) if t < 6 else ("v18", 72)))
        a(f"v_add_u32 v{10+t}, {c}, {src}\nv_lshl_add_u32 v{10+t}, v{10+t}, 13, v19")
    def gemm(nload, ldfn, nB, rdfn, mm, NT_A):
        for ks in range(6): ldfn(ks)
        a(f"s_waitcnt vmcnt({6*nload})\ns_barrier")
        rdfn(0, 0)
        for ks in range(8):
            if ks < 7: rdfn(ks+1, (ks+1) & 1)
            rem = min(5, 7-ks) if ks < 2 else 7-ks
            a(f"s_waitcnt vmcnt({rem*nload}) lgkmcnt({nB if ks < 7 else 0})")
            if ks < 2: ldfn(6+ks)
            mm(ks, ks & 1)
    ACC = 32; BUF = 160
    def ldA(ks):
        for t in range(7): a(f"global_load_dwordx4 {ar((ks*7+t)*4,4)}, v{10+t}, s[6:7] offset:{64*ks}")
    a("v_lshlrev_b32 v20, 4, v0")
    def rdA(ks, bf):
        for mt in range(4): a(f"ds_read_b128 {vr(BUF+bf*16+mt*4,4)}, v20 offset:{(ks*4+mt)*1024}")
    def mmA(ks, bf):
        for t in range(7):
            for mt in range(4):
                d = vr(ACC+(t*4+mt)*4, 4)
                a(f"v_mfma_f32_16x16x32_bf16 {d}, {vr(BUF+bf*16+mt*4,4)}, {ar((ks*7+t)*4,4)}, {d if ks else 0}")
    gemm(7, ldA, 4, rdA, mmA, 7)
    a(f"""
    s_lshl_b32 s20, s16, 2
    s_add_u32 s20, s20, s3
    s_mul_i32 s20, s20, {7*14336}
    s_lshl_b32 s21, s17, 11
    s_add_u32 s20, s20, s21
    v_add_u32 v21, s20, v20
    s_mov_b32 s22, {hex(f32(SC))}
    """)
    for t in range(7):
        for kkl in range(2):
            b = ACC + (t*4 + kkl*2)*4
            o = BUF + ((t*2+kkl) % 4)*4
            for i in range(8): a(f"v_mul_f32 v{b+i}, s22, v{b+i}")
            for i in range(4): a(f"v_cvt_pk_bf16_f32 v{o+i}, v{b+2*i}, v{b+2*i+1}")
            a(f"global_store_dwordx4 v21, {vr(o,4)}, s[12:13] offset:{kkl*1024}")
        if t < 6: a(f"v_add_u32 v21, 14336, v21")
    a("s_endpgm")
    a.label("K1_B")
    a(f"""
    s_sub_u32 s17, s17, 7               ; p
    s_mul_i32 s20, s16, 229376
    s_lshl_b32 s21, s17, 7
    s_add_u32 s20, s20, s21
    s_mul_i32 s21, s3, {64*896}
    s_add_u32 s20, s20, s21
    v_lshrrev_b32 v7, 3, v0
    v_mul_u32_u24 v7, 896, v7
    v_and_b32 v8, 7, v0
    v_lshl_add_u32 v7, v8, 4, v7
    v_add_u32 v7, s20, v7
    s_lshl_b32 s21, s3, 13
    s_waitcnt lgkmcnt(0)
    """)
    for i in range(8):
        a(f"s_add_u32 m0, s21, {i*1024}\nv_add_u32 v8, {i*8*896}, v7\nglobal_load_lds_dwordx4 v8, s[10:11]")
    a("""
    s_mul_i32 s22, s3, 3
    s_min_u32 s23, s3, 1
    s_add_u32 s22, s22, s23             ; kk_start
    s_lshl_b32 s23, s22, 18             ; *32*8192
    s_add_u32 s23, s23, s19
    v_lshlrev_b32 v9, 13, v6
    v_lshl_add_u32 v9, v3, 4, v9
    v_add_u32 v9, s23, v9
    """)
    for mt in range(8): a(f"v_add_u32 v{10+mt}, {((mt>>1)*32 + (mt&1)*4)*8192}, v9")
    a("""
    v_lshl_add_u32 v20, v3, 3, v4
    v_lshlrev_b32 v20, 7, v20
    v_lshl_add_u32 v20, v5, 4, v20
    """)
    def ldB(ks):
        for mt in range(8): a(f"global_load_dwordx4 {ar((ks*8+mt)*4,4)}, v{10+mt}, s[8:9] offset:{64*ks}")
    def rdB(ks, bf):
        for nt in range(4):
            for hf in range(2):
                a(f"ds_read_b64_tr_b16 {vr(BUF+bf*16+nt*4+hf*2,2)}, v20 offset:{(32*ks+4*hf)*128 + (nt>>1)*64 + (nt&1)*8}")
    def mmB(ks, bf):
        for mt in range(8):
            for nt in range(4):
                d = vr(ACC+(mt*4+nt)*4, 4)
                a(f"v_mfma_f32_16x16x32_bf16 {d}, {ar((ks*8+mt)*4,4)}, {vr(BUF+bf*16+nt*4,4)}, {d if ks else 0}")
    gemm(8, ldB, 8, rdB, mmB, 8)
    a(f"""
    s_lshl_b32 s20, s17, 5
    s_add_u32 s20, s20, s16
    s_mul_i32 s20, s20, {2*14336}
    s_lshl_b32 s21, s22, 10
    s_add_u32 s20, s20, s21
    s_add_u32 s20, s20, {WB}
    v_lshlrev_b32 v21, 4, v0
    v_add_u32 v21, s20, v21
    """)
    cnt = 0
    for nt in range(4):
        if nt: a(f"v_add_u32 v21, {14336 if nt & 1 else 16*2*14336 - 14336}, v21")
        for kkl in range(4):
            o = BUF + (cnt % 4)*4; cnt += 1
            for i in range(4):
                b = ACC + ((kkl*2 + (i >> 1))*4 + nt)*4 + (i & 1)*2
                a(f"v_cvt_pk_bf16_f32 v{o+i}, v{b}, v{b+1}")
            a(f"global_store_dwordx4 v21, {vr(o,4)}, s[12:13] offset:{kkl*1024}")
    a("s_endpgm")
    a.label("K1_misc")
    a(f"""
    s_sub_u32 s17, s17, 28
    s_lshl_b32 s17, s17, 3
    s_add_u32 s17, s17, s16             ; id 0..31
    s_lshl_b32 s18, s17, 12
    s_lshl_b32 s19, s3, 10
    s_add_u32 s18, s18, s19
    v_lshlrev_b32 v2, 4, v0
    v_add_u32 v3, s18, v2
    v_add_u32 v2, s19, v2               ; tid*16
    v_mov_b32 v4, -1
    v_mov_b32 v5, -1
    v_mov_b32 v6, -1
    v_mov_b32 v7, -1
    s_mov_b32 s23, 0x20000
    s_waitcnt lgkmcnt(0)
    """)
    for base, size, n in ((MX+7168, 451584, 4), (NX+7168, 451584, 4), (MY+7168, 451584, 4), (NY+7168, 451584, 4), (PS, 645120, 5)):
        add64(a, 20, 12, base)
        a(f"s_mov_b32 s22, {size}")
        for i in range(n):
            a(f"s_mov_b32 s24, {i*131072}\nbuffer_store_dwordx4 v[4:7], v3, s[20:23], s24 offen")
    a(f"""
    s_cmp_gt_u32 s17, 9
    s_cbranch_scc1 K1_end
    s_cmp_lt_u32 s17, 2
    s_cbranch_scc1 K1_mem0
    v_mov_b32 v8, 0
    v_mov_b32 v9, 0
    v_mov_b32 v10, 0
    v_mov_b32 v11, 0
    v_add_u32 v3, {FL - 8192}, v3
    global_store_dwordx4 v3, v[8:11], s[12:13]
    s_endpgm
K1_mem0:
    v_lshrrev_b32 v8, 4, v3
    v_cmp_gt_u32 vcc, 448, v8
    s_and_saveexec_b64 s[26:27], vcc
    s_cbranch_execz K1_end
    global_load_dwordx4 v[12:15], v3, s[14:15]
    v_and_b32 v9, 7, v8
    v_mul_u32_u24 v9, 896, v9
    v_lshrrev_b32 v10, 4, v8
    v_lshl_add_u32 v9, v10, 5, v9
    v_bfe_u32 v10, v8, 3, 1
    v_lshl_add_u32 v9, v10, 2, v9
    global_load_dword v16, v9, s[14:15]
    global_load_dword v17, v9, s[14:15] offset:8
    global_load_dword v18, v9, s[14:15] offset:16
    global_load_dword v19, v9, s[14:15] offset:24
    v_add_u32 v20, {NX}, v3
    v_add_u32 v21, {NY}, v3
    v_add_u32 v22, {MX}, v3
    v_add_u32 v23, {MY}, v3
    s_mov_b32 s24, -2
    s_waitcnt vmcnt(0)
    """)
    for i in range(12, 20): a(f"v_min_u32 v{i}, s24, v{i}")
    a("""
    global_store_dwordx4 v20, v[12:15], s[12:13]
    global_store_dwordx4 v21, v[12:15], s[12:13]
    global_store_dwordx4 v22, v[16:19], s[12:13]
    global_store_dwordx4 v23, v[16:19], s[12:13]
K1_end:
    s_endpgm
    """)
```

```python
from emit import *
from layout import *
from k1 import add64
import math
LB = 163840 - 256
SPIN = int(__import__("os").environ.get("SPIN", 0x80000))
NHOLD = 120

class K2:
    def __init__(self, a, opts):
        self.a = a; self.o = opts; self.slot = 0
    def bcast_from_wave0(self, body, dst):
        a = self.a; L = a.newlab("BC"); off = LB + 4*self.slot; self.slot += 1
        a(f"""
        s_cmp_lg_u32 s3, 0
        s_cbranch_scc1 {L}
        s_mov_b64 exec, 1
        """)
        body()
        a(f"""
        v_mov_b32 v3, {off}
        ds_write_b32 v3, v2
        s_mov_b64 exec, -1
        s_waitcnt lgkmcnt(0)
        {L}:
        s_barrier
        v_mov_b32 v3, {off}
        ds_read_b32 v2, v3
        s_waitcnt lgkmcnt(0)
        v_readfirstlane_b32 {dst}, v2
        """)
    def claim(self, off, dst, sreg=None):
        a = self.a
        def body():
            if sreg: a(f"v_mov_b32 v3, {sreg}\nv_add_u32 v3, {off}, v3")
            else: a(f"v_mov_b32 v3, {off}")
            a("v_mov_b32 v2, 1\nglobal_atomic_add v2, v3, v2, s[18:19] sc0 sc1\ns_waitcnt vmcnt(0)")
        self.bcast_from_wave0(body, dst)
    def signal(self, off):
        a = self.a; L = a.newlab("SG")
        a(f"""
        s_waitcnt vmcnt(0)
        s_barrier
        s_cmp_lg_u32 s3, 0
        s_cbranch_scc1 {L}
        s_mov_b64 exec, 1
        v_mov_b32 v3, {off}
        v_mov_b32 v2, 1
        global_atomic_add v3, v2, s[18:19] sc1
        s_mov_b64 exec, -1
        {L}:
        """)
    def wait_cnt(self, off, val, code):
        a = self.a; L = a.newlab("WC"); P = a.newlab("WP")
        a(f"""
        s_cmp_lg_u32 s3, 0
        s_cbranch_scc1 {L}
        v_mov_b32 v3, {off}
        s_mov_b32 s24, {SPIN}
        {P}:
        global_load_dword v2, v3, s[18:19] sc1
        s_sub_u32 s24, s24, 1
        s_cbranch_scc1 BAIL_{code}
        s_waitcnt vmcnt(0)
        v_readfirstlane_b32 s25, v2
        s_cmp_ge_u32 s25, {val}
        s_cbranch_scc1 {L}
        s_sleep 4
        s_branch {P}
        {L}:
        s_barrier
        """)
        self.bails.add(code)
    def stamp(self, idx, cond=None):
        if not self.o.get("stamp"): return
        a = self.a; L = a.newlab("ST")
        a(f"""
        s_cmp_lg_u32 s3, 0
        s_cbranch_scc1 {L}
        s_memrealtime s[24:25]
        v_mov_b32 v3, {4*idx}
        s_waitcnt lgkmcnt(0)
        v_mov_b32 v2, s24
        s_mov_b64 exec, 1
        global_atomic_umax v3, v2, s[16:17] sc1
        s_mov_b64 exec, -1
        {L}:
        """)
    def gen(self):
        a = self.a; self.bails = set()
        a.raw(".globl main_kernel\n.p2align 8\n.type main_kernel,@function\nmain_kernel:")
        a(f"""
        s_load_dwordx4 s[4:7], s[0:1], 0
        s_load_dwordx4 s[8:11], s[0:1], 16
        s_load_dwordx2 s[12:13], s[0:1], 96
        s_load_dwordx2 s[14:15], s[0:1], 80
        s_load_dwordx2 s[16:17], s[0:1], 88
        s_getreg_b32 s20, hwreg(HW_REG_XCC_ID, 0, 4)
        s_cmp_ge_u32 s2, 256
        s_cbranch_scc1 K2_end
        v_lshrrev_b32 v1, 6, v0
        v_and_b32 v0, 63, v0
        v_readfirstlane_b32 s3, v1
        v_lshlrev_b32 v1, 4, v0
        s_and_b32 s20, s20, 7
        s_waitcnt lgkmcnt(0)
        """)
        add64(a, 18, 12, FL)
        def elect():
            L = a.newlab("EL")
            a(f"""
            s_add_u32 s21, s20, 1
            v_mov_b32 v4, s21
            v_mov_b32 v5, 0
            v_mov_b32 v3, {C_W}
            s_lshl_b32 s22, s20, 7
            v_mov_b32 v6, s22
            v_add_u32 v6, {C_CNT}, v6
            v_mov_b32 v7, 1
            global_atomic_cmpswap v4, v3, v[4:5], s[18:19] sc0 sc1
            global_atomic_add v2, v6, v7, s[18:19] sc0 sc1
            s_waitcnt vmcnt(0)
            v_readfirstlane_b32 s22, v4
            v_readfirstlane_b32 s23, v2
            s_cmp_eq_u32 s22, 0
            s_cselect_b32 s22, s21, s22          ; winner (1..8)
            s_cmp_lg_u32 s22, s21
            s_cselect_b32 s23, 99, s23
            s_cmp_lt_u32 s23, {self.o.get('team', 30)}
            s_cbranch_scc1 {L}
            v_mov_b32 v3, {C_WCNT}
            global_atomic_add v2, v3, v7, s[18:19] sc0 sc1
            s_waitcnt vmcnt(0)
            v_add_u32 v2, 32, v2
            {L}:
            s_lshl_b32 s22, s22, 16
            v_or_b32 v2, s22, v2
            """)
        self.bcast_from_wave0(elect, "s21")
        a(f"""
        s_lshr_b32 s22, s21, 16               ; winner
        s_and_b32 s21, s21, 0xffff            ; role
        """)
        self.stamp(0)
        if self.o.get("fftonly"):
            a("s_branch ROLE_FFT")
        a(f"""
        s_cmp_lt_u32 s21, 32
        s_cbranch_scc1 ROLE_CHAIN
        s_sub_u32 s21, s21, 32
        s_cmp_ge_u32 s21, {NHOLD}
        s_cbranch_scc1 ROLE_FFT
        """)
        a("s_mov_b32 s29, 0")
        for i in range(NHOLD//30 - 1):
            a("s_sub_u32 s23, s21, 30\ns_cmp_ge_u32 s21, 30\ns_cselect_b32 s21, s23, s21\ns_addc_u32 s29, s29, 0")
        a("""
        s_cmp_lt_u32 s21, 14
        s_cbranch_scc1 ROLE_HB
        s_sub_u32 s21, s21, 14
        s_branch ROLE_HA
        """)
        from fft import gen_fft
        from chain import gen_chain, gen_hold
        gen_chain(self)
        gen_hold(self)
        gen_fft(self)
        for c in sorted(self.bails):
            a(f"""
            BAIL_{c}:
            s_mov_b64 exec, 1
            v_mov_b32 v3, {4*(48 + c)}
            v_mov_b32 v2, 1
            global_atomic_add v3, v2, s[16:17] sc1
            s_endpgm
            """)
        a("K2_end:\ns_endpgm")
def gen_k2(a, opts): K2(a, opts).gen()
```

```python
WA = 0
WB = WA + 16*401408
MX = WB + 14*458752
NX = MX + 64*7168
MY = NX + 64*7168
NY = MY + 64*7168
PS = NY + 64*7168
FL = PS + 64*10240
PX = FL + 32768
XT = PX + 64*16*3072
WT = XT + 512*4096
ZT = WT + 228*8192
VO = ZT + 57*32768
END = VO + 64*14*32768
F_VO = 0; F_PX = 4096
C0 = 8192
C_W = C0; C_CNT = C0 + 128; C_WCNT = C0 + 128*9; C_MASK = C0 + 128*10; C_READY = C0 + 128*11
C_QVO = C0 + 128*12; C_QOUT = C_QVO + 128*14; C_QA = C_QOUT + 128*14
C_Q1 = C_QA + 128*16; C_Q2 = C_Q1 + 128; C_Q3 = C_Q2 + 128; C_D1 = C_Q3 + 128; C_D2 = C_D1 + 128
assert C_D2 + 128 <= 32768
def colA(w, tile, nl):
    g, r = nl >> 2, nl & 3
    if tile < 4: return 112*w + 16*g + 8*(tile >> 1) + 4*(r >> 1) + 2*(tile & 1) + (r & 1)
    if tile < 6: return 112*w + 64 + 12*g + 4*(r >> 1) + 2*(tile & 1) + (r & 1)
    return 112*w + 64 + 12*g + 8 + r
def colB(b, t, c): return 32*b + 8*(c >> 2) + 4*t + (c & 3)
if __name__ == "__main__":
    assert sorted(colA(w, t, n) for w in range(4) for t in range(7) for n in range(16)) == list(range(448))
    for k, v in list(globals().items()):
        if isinstance(v, int): print(k, v, hex(v))
```

```python
import sys, os
sys.path.insert(0, os.path.dirname(__file__))
from emit import *
from k1 import gen_k1
NAME = "concat_heads__spectral_gfnet__memory_aug_recurrent_mem_tr__prompt"
def build(path, k2=True, opts=None):
    ref = open(f"cdna_kernels/{NAME}.s.ref").read().split("\n")
    head = [l for l in ref if l.startswith(";") and "@launch" not in l and "Override" not in l and "grid=ceil" not in l]
    a = Asm()
    for l in head: a.raw(l)
    a.raw("; @launch kernel=pre_kernel grid=(256,1,1) block=(256,1,1) lds=32768")
    if k2: a.raw("; @launch kernel=main_kernel grid=(256,1,1) block=(256,1,1) lds=163840")
    a.raw('.amdgcn_target "amdgcn-amd-amdhsa--gfx950"\n.text')
    gen_k1(a)
    if k2:
        from k2 import gen_k2
        gen_k2(a, opts or {})
    a.raw('.section .rodata,"a"\n.p2align 6')
    a.raw(kernel_desc("pre_kernel"))
    if k2: a.raw(".p2align 6\n" + kernel_desc("main_kernel", sgpr=100))
    open(path, "w").write(a.text())
    print(path, len(a.text()), "bytes; hazard nops", a.nops)
if __name__ == "__main__":
    out = sys.argv[1] if len(sys.argv) > 1 else f"cdna_kernels/{NAME}.s"
    opts = dict(x.split("=") for x in sys.argv[2:])
    build(out, k2=opts.get("k2", "1") == "1", opts=opts)
```

```python
from emit import *
from layout import *
from k1 import add64
from k2 import SPIN, LB
NSTEP = 63
def wA(i, n=4):
    return ar(i, n) if i < 256 else vr(120 + i - 256, n)
def wB(i, n=4):
    return ar(i, n) if i < 256 else vr(176 + i - 256, n)

def rot_setup(a):
    a("s_lshl_b32 s28, s3, 1\ns_mul_i32 s28, s28, s43")
    for jj in range(7):
        a(f"s_add_u32 s27, s28, {jj}\ns_sub_u32 s44, s27, 7\ns_cmp_ge_u32 s27, 7\ns_cselect_b32 s27, s44, s27\ns_lshl_b32 s{60+jj}, s27, 11")
def load_A(K):
    a = K.a
    rot_setup(a)
    a(f"""
    s_lshl_b32 s27, s26, 2
    s_add_u32 s27, s27, s3
    s_mul_i32 s27, s27, 100352
    v_add_u32 v3, s27, v1
    """)
    for t in range(7):
        for jj in range(7):
            a(f"v_add_u32 v2, s{60+jj}, v3")
            for e in range(2): a(f"global_load_dwordx4 {wA((t*7+jj)*8+4*e)}, v2, s[12:13] offset:{e*1024}")
        if t < 6: a("v_add_u32 v3, 14336, v3")
        if t >= 3: a("s_waitcnt vmcnt(42)")
def load_B(K):
    a = K.a
    rot_setup(a)
    a(f"""
    s_mul_i32 s27, s26, 458752
    s_mul_i32 s28, s3, 114688
    s_add_u32 s27, s27, s28
    s_add_u32 s27, s27, {WB}
    v_add_u32 v3, s27, v1
    s_mul_i32 s28, s3, 28672
    """)
    for n in (6, 7, 0, 1, 2, 3, 4, 5):
        if n == 6: a(f"v_add_u32 v3, {6*14336}, v3")
        elif n == 0: a(f"v_subrev_u32 v3, {7*14336}, v3")
        else: a("v_add_u32 v3, 14336, v3")
        for jj in range(7):
            a(f"v_add_u32 v2, s{60+jj}, v3")
            if n >= 6:
                a(f"s_add_u32 m0, s28, {((n-6)*7+jj)*2048}")
                for e in range(2): a(f"global_load_lds_dwordx4 v2, s[12:13] offset:{e*1024}")
            else:
                for e in range(2): a(f"global_load_dwordx4 {wB((n*7+jj)*8+4*e)}, v2, s[12:13] offset:{e*1024}")
        if 1 <= n < 6: a("s_waitcnt vmcnt(42)")

LATE = []
def st_mode(a, ins):
    L1 = a.newlab("SM"); L2 = a.newlab("SM")
    a(f"s_cbranch_scc0 {L1}")
    for i in ins: a(i)
    a(f"{L2}:")
    LATE.append(f"{L1}:\n" + "\n".join(i + (" sc1" if i.startswith("global_store") else "") for i in ins) + f"\ns_branch {L2}")

def idx_setup(a, reg):
    a(f"""
    v_and_b32 v2, 8, v0
    v_cmp_ne_u32 s[50:51], 0, v2
    v_mov_b32 v2, 0x4444
    v_mov_b32 v3, 0xeeee
    v_cndmask_b32 {reg}, v2, v3, s[50:51]
    """)

def u_phase(a, MA, UA, WT_, vlds, hook=None, ex=()):
    def rd(n):
        b = WT_ + 8*(n & 1)
        a(f"ds_read_b128 {vr(b,4)}, {vlds} offset:{n*2048}\nds_read_b128 {vr(b+4,4)}, {vlds} offset:{n*2048+1024}")
    order = [(j, t) for j in range(7) for t in range(2)]
    nn = lambda q: order[q][1]*7 + order[q][0]
    def rdq(q):
        b = WT_ + 8*(q & 1); n = nn(q)
        a(f"ds_read_b128 {vr(b,4)}, {vlds} offset:{n*2048}\nds_read_b128 {vr(b+4,4)}, {vlds} offset:{n*2048+1024}")
    def rd1(q, e):
        n = nn(q); a(f"ds_read_b128 {vr(WT_ + 8*(q & 1) + 4*e, 4)}, {vlds} offset:{n*2048 + 1024*e}")
    ex = list(ex)
    rdq(0); rdq(1)
    for q, (j, t) in enumerate(order):
        if hook and q == 4: a("s_waitcnt lgkmcnt(2)")
        elif hook and q in (2, 3): a(f"s_waitcnt lgkmcnt(7)")
        else: a(f"s_waitcnt lgkmcnt({2 if q < 13 else 0})")
        a(f"v_smfmac_f32_16x16x64_bf16 {vr(UA+(6+t)*4,4)}, {vr(MA+4*j,4)}, {vr(WT_+8*(q&1),8)}, v4")
        for hl in range(3):
            if hl < 2 and q + 2 < 14: rd1(q+2, hl)
            elif ex: a(ex.pop(0))
            a(f"v_smfmac_f32_16x16x64_bf16 {vr(UA+(hl*2+t)*4,4)}, {vr(MA+4*j,4)}, {wB(((hl*2+t)*7+j)*8,8)}, v4")
        if hook and q == 1: hook()
    assert not ex

def full_check(a, regs, tmp):
    regs = list(regs)
    a(f"v_max3_u32 {tmp}, v{regs[0]}, v{regs[1]}, v{regs[2]}")
    rest = regs[3:]
    while len(rest) >= 2:
        a(f"v_max3_u32 {tmp}, {tmp}, v{rest[0]}, v{rest[1]}"); rest = rest[2:]
    if rest: a(f"v_max_u32 {tmp}, {tmp}, v{rest[0]}")
    a(f"v_cmp_eq_u32 vcc, -1, {tmp}")

def gen_chain(K):
    a = K.a; o = K.o
    PROF = o.get("prof")
    def ts(i, wait=False):
        if PROF:
            a(f"s_memtime s[{60+2*i}:{61+2*i}]")
            if wait: a("s_waitcnt lgkmcnt(0)")
    def acc(n):
        if not PROF: return
        a("s_waitcnt lgkmcnt(0)")
        for i in range(n-1): a(f"s_sub_u32 s78, s{62+2*i}, s{60+2*i}\ns_add_u32 s{70+i}, s{70+i}, s78")
        a(f"s_sub_u32 s78, s60, s79\ns_cmp_eq_u32 s79, 0\ns_cselect_b32 s78, 0, s78\ns_add_u32 s{70+n-1}, s{70+n-1}, s78\ns_mov_b32 s79, s{60+2*(n-1)}\ns_add_u32 s74, s74, s79")
    def cnt(i):
        if PROF: a(f"s_add_u32 s{i}, s{i}, 1")
    def pinit():
        if PROF:
            for i in range(70, 80): a(f"s_mov_b32 s{i}, 0")
    def pdump(base):
        if not PROF: return
        L = a.newlab("PD")
        a(f"s_cmp_lg_u32 s3, {int(PROF)-1}\ns_cbranch_scc1 {L}\ns_lshl_b32 s27, s26, 5\ns_add_u32 s27, s27, {base}\nv_mov_b32 v3, s27\ns_mov_b64 exec, 1")
        for i in range(8): a(f"v_mov_b32 v2, s{70+i}\nglobal_store_dword v3, v2, s[16:17] offset:{4*i}")
        a(f"s_mov_b64 exec, -1\n{L}:")
    a.label("ROLE_CHAIN")
    a("v_mbcnt_lo_u32_b32 v0, -1, 0\nv_mbcnt_hi_u32_b32 v0, -1, v0\nv_lshlrev_b32 v1, 4, v0")
    L = a.newlab("RG")
    a(f"""
    s_cmp_lg_u32 s3, 0
    s_cbranch_scc1 {L}
    s_mov_b64 exec, 1
    s_lshl_b32 s23, 1, s20
    v_mov_b32 v2, s23
    v_mov_b32 v3, {C_MASK}
    global_atomic_or v2, v3, v2, s[18:19] sc0 sc1
    s_waitcnt vmcnt(0)
    v_mov_b32 v2, 1
    v_mov_b32 v3, {C_READY}
    global_atomic_add v3, v2, s[18:19] sc1
    s_mov_b64 exec, -1
    {L}:
    s_mov_b32 s43, 1
    s_cmp_lt_u32 s21, 16
    s_cbranch_scc0 CH_B
    s_mov_b32 s26, s21
    s_branch LOAD_A
    CH_B:
    s_sub_u32 s26, s21, 16
    s_branch LOAD_B
    ROLE_HA:
    s_mov_b32 s43, 0
    s_mov_b32 s26, s21
    LOAD_A:
    """)
    load_A(K)
    a("s_cmp_eq_u32 s43, 0\ns_cbranch_scc1 HA_start")
    def team_wait():
        K.wait_cnt(C_READY, 30, 3)
        a(f"""
        v_mov_b32 v3, {C_MASK}
        global_load_dword v2, v3, s[18:19] sc1
        s_waitcnt vmcnt(0)
        v_readfirstlane_b32 s23, v2
        s_bcnt1_i32_b32 s23, s23
        s_cmp_eq_u32 s23, {1 if not o.get('slow') else 77}
        s_cselect_b32 s23, 1, 0
        """)
    MA, T, XK, MK = 8, 36, 64, 96
    LM = 16384; LZ = 32768
    idx_setup(a, "v4")
    def xiaddr(d, ci):
        a(f"v_lshrrev_b32 v14, 2, {ci}\nv_and_b32 v15, 3, {ci}\nv_lshlrev_b32 {d}, 11, v14\nv_lshl_add_u32 {d}, v15, 8, {d}\nv_lshl_add_u32 {d}, v8, 4, {d}")
    a(f"""
    v_and_b32 v8, 15, v0                 ; c
    v_lshrrev_b32 v9, 4, v0              ; g
    s_mul_i32 s27, s3, 14
    v_add_u32 v10, s27, v9               ; ci0
    v_lshrrev_b32 v11, 1, v9
    v_add3_u32 v11, v11, s27, 12         ; ci1
    v_and_b32 v12, 7, v8
    v_lshlrev_b32 v12, 4, v12
    v_lshrrev_b32 v14, 1, v10
    v_lshl_add_u32 v5, v14, 8, v12
    v_and_b32 v14, 1, v10
    v_lshl_add_u32 v5, v14, 3, v5
    v_add_u32 v5, {LM}, v5
    v_lshrrev_b32 v14, 1, v11
    v_lshl_add_u32 v6, v14, 8, v12
    v_and_b32 v14, 1, v11
    v_lshl_add_u32 v6, v14, 3, v6
    v_add_u32 v6, {LM}, v6
    v_and_b32 v14, 1, v9
    v_cmp_eq_u32 vcc, 1, v14
    v_mov_b32 v14, {LZ}
    v_cndmask_b32 v6, v6, v14, vcc
    v_mov_b64 v[16:17], 0
    v_mov_b64 v[18:19], 0
    v_add_u32 v14, {LZ}, v1
    ds_write_b128 v14, v[16:19]
    """)
    xiaddr("v13", "v10"); xiaddr("v7", "v11")
    a(f"""
    v_and_b32 v14, 2, v8
    v_lshrrev_b32 v15, 3, v8
    v_add_u32 v14, v14, v15              ; Ag
    v_lshlrev_b32 v112, 7, v14
    v_bfe_u32 v14, v8, 2, 1
    v_lshl_add_u32 v112, v14, 3, v112
    v_and_b32 v14, 1, v8
    v_lshl_add_u32 v112, v14, 2, v112
    s_lshl_b32 s27, s26, 9
    v_add_u32 v112, s27, v112
    s_lshl_b32 s27, s26, 7
    s_add_u32 s27, s27, 8192
    v_lshl_add_u32 v113, v8, 2, s27
    v_and_b32 v14, 1, v9
    v_cmp_eq_u32 vcc, 1, v14
    v_cndmask_b32 v112, v112, v113, vcc
    v_lshrrev_b32 v15, 1, v9
    v_lshl_add_u32 v112, v15, 4, v112
    s_lshl_b32 s27, s3, 5
    v_add_u32 v112, s27, v112
    s_mul_i32 s27, s3, 3072
    v_add_u32 v114, s27, v1
    v_add_u32 v14, 1, v15
    v_lshlrev_b32 v115, 10, v14
    v_lshl_add_u32 v115, v8, 4, v115
    v_and_b32 v14, 3, v8
    v_lshl_add_u32 v14, v14, 1, v15
    v_lshlrev_b32 v14, 4, v14
    v_cndmask_b32 v115, v115, v14, vcc
    s_lshr_b32 s27, s3, 1
    s_lshl_b32 s27, s27, 8
    s_and_b32 s28, s3, 1
    s_lshl_b32 s28, s28, 3
    s_add_u32 s27, s27, s28
    v_add_u32 v115, s27, v115
    ; Sel: lane (c=(tile',i), g): e=(tsel,r): 1 if tsel==tile' and (4g+r)%8==i
    v_and_b32 v10, 1, v9
    v_lshlrev_b32 v10, 2, v10
    v_and_b32 v11, 7, v8
    v_sub_u32 v10, v11, v10              ; r* = i - 4(g&1)
    v_lshrrev_b32 v11, 3, v8
    v_lshl_add_u32 v10, v11, 2, v10
    v_and_b32 v12, 4, v8
    v_lshrrev_b32 v12, 2, v12
    v_and_b32 v14, 1, v9
    v_cmp_eq_u32 vcc, v12, v14
    v_cndmask_b32 v10, 15, v10, vcc
    v_mov_b32 v11, 0x3f80
    v_mov_b32 v12, 0x3f800000
    """)
    for k in range(4):
        a(f"""
        v_cmp_eq_u32 vcc, {2*k}, v10
        v_cndmask_b32 v{116+k}, 0, v11, vcc
        v_cmp_eq_u32 vcc, {2*k+1}, v10
        v_cndmask_b32 v{116+k}, v{116+k}, v12, vcc
        """)
    for r in (XK+12, XK+14, XK+28, XK+30): a(f"v_mov_b64 {vr(r,2)}, 0")
    def rot_half():
        for jj in range(7): a(f"s_lshr_b32 s{60+jj}, s{60+jj}, 1")
        for jj in range(2, 7): a(f"s_sub_u32 s{88+jj}, s{60+jj}, s60")
    rot_half()
    a(f"""
    v_mov_b32 v0, v13
    v_add_u32 v113, s61, v1
    v_add_u32 v1, s60, v1
    s_mov_b32 s44, 0x0000ffff
    s_mov_b32 s45, 0x0000ffff
    s_mov_b32 s46, 0x000fffff
    s_mov_b32 s47, 0x000fffff
    s_mov_b32 s40, 0
    """)
    add64(a, 30, 12, MX); add64(a, 36, 12, PS); add64(a, 32, 12, XI + 2048)
    a(f"""
    s_lshl_b32 s27, s26, 2
    s_add_u32 s27, s27, s3
    s_cmp_lt_u32 s26, 8
    s_cbranch_scc1 A_pf_vo
    s_sub_u32 s27, s27, s26
    s_add_u32 s27, s27, 7
    s_cmp_lg_u32 s3, 0
    s_cbranch_scc1 A_pf_vo
    s_mov_b32 s59, {C_READY}
    s_mov_b32 s55, 0
    s_sub_u32 s27, s26, 8
    s_mul_i32 s27, s27, 7168
    s_add_u32 s27, s27, {XI}
    s_mov_b32 s54, 28672
    s_cmp_lt_u32 s26, 12
    s_cbranch_scc1 A_pf_init
    s_mov_b32 s54, 7168
    s_mov_b32 s27, {MX}
    s_cmp_ge_u32 s26, 14
    s_cselect_b32 s54, 10240, s54
    s_cmp_eq_u32 s26, 14
    s_cselect_b32 s27, {PS}, s27
    s_cmp_eq_u32 s26, 15
    s_cselect_b32 s27, {PS + 2048}, s27
    A_pf_init:
    v_lshlrev_b32 v3, 3, v1
    """)
    add64(a, 38, 12, "s27")
    for i in range(2):
        a("global_load_dword v2, v3, s[38:39] sc1"); add64(a, 38, 38, "s54")
    a(f"""
    s_branch A_pf_done
    A_pf_vo:
    s_and_b32 s59, s27, -4
    s_add_u32 s59, s59, 128
    s_mov_b32 s55, 64
    {"s_mov_b32 s59, 32000" if o.get("nopf") else ""}
    {"s_mov_b32 s55, 0" if o.get("nopf") else ""}
    s_lshl_b32 s27, s27, 13
    s_add_u32 s27, s27, {VO + 2*458752}
    s_lshl_b32 s28, s60, 3
    s_sub_u32 s27, s27, s28
    s_mov_b32 s54, 458752
    """)
    add64(a, 38, 12, "s27")
    a("A_pf_done:\ns_mov_b32 s58, 0")
    team_wait()
    K.stamp(4)
    def xkeys():
        for kt in range(2):
            for q in range(3): a(f"global_load_dwordx4 {vr(XK+16*kt+4*q,4)}, v0, s[32:33] offset:{2048*q-2048+1024*kt}")
        a("s_mov_b64 exec, s[44:45]")
        for kt in range(2): a(f"global_load_dwordx4 {vr(XK+16*kt+12,4)}, v7, s[32:33] offset:{1024*kt-2048}")
        a("s_mov_b64 exec, -1")
    def own(va, vb, lab, code):
        a(f"""
        global_load_dwordx4 {vr(MA,4)}, {va}, s[30:31] sc1
        global_load_dwordx4 {vr(MA+4,4)}, {vb}, s[30:31] sc1
        s_sub_u32 s41, s41, 1
        s_cbranch_scc1 BAIL_{code}
        s_waitcnt vmcnt(1)
        v_max3_u32 v2, v{MA}, v{MA+1}, v{MA+2}
        s_waitcnt vmcnt(0)
        v_max3_u32 v2, v2, v{MA+3}, v{MA+4}
        v_max3_u32 v2, v2, v{MA+5}, v{MA+6}
        v_max_u32 v2, v2, v{MA+7}
        v_cmp_eq_u32 vcc, -1, v2
        s_cbranch_vccnz {lab}
        """)
    def share_a(va):
        for jj in range(2, 7): a(f"v_add_u32 v{MA+4*jj}, s{88+jj}, {va}")
    def tmf(t, j): return f"v_smfmac_f32_16x16x64_bf16 {vr(T+4*t,4)}, {vr(MA+4*j,4)}, {wA((t*7+j)*8,8)}, v4"
    def zeroT():
        for i in range(14): a(f"v_mov_b64 {vr(T+2*i,2)}, 0")
    pinit()
    xkeys()
    a.label("A_top")
    zeroT()
    share_a("v1")
    a("v_add_u32 v104, 1024, v5")
    a(f"s_mov_b32 s41, {SPIN}\ns_mov_b32 s42, 0")
    K.bails.add(4)
    def ld2(b, va, vb):
        a(f"global_load_dwordx4 {vr(b,4)}, {va}, s[30:31] sc1\nglobal_load_dwordx4 {vr(b+4,4)}, {vb}, s[30:31] sc1")
    def chk2(b):
        a(f"""
        s_waitcnt vmcnt(3)
        v_max3_u32 v2, v{b}, v{b+1}, v{b+2}
        s_waitcnt vmcnt(2)
        v_max3_u32 v2, v2, v{b+3}, v{b+4}
        v_max3_u32 v2, v2, v{b+5}, v{b+6}
        v_max_u32 v2, v2, v{b+7}
        v_cmp_eq_u32 vcc, -1, v2
        """)
    ld2(MA, "v1", "v113")
    a(f"s_sleep {o.get('stg', 3)}")
    a.label("A_poll")
    cnt(75)
    ld2(MK, "v1", "v113"); chk2(MA)
    a("s_cbranch_vccz A_go0")
    ld2(MA, "v1", "v113"); chk2(MK)
    a("s_sub_u32 s41, s41, 1\ns_cbranch_scc1 BAIL_4\ns_cbranch_vccnz A_poll")
    ts(0)
    a(tmf(0, 0).replace(vr(MA,4), vr(MK,4)))
    for i in range(4): a(f"v_mov_b64 {vr(MA+2*i,2)}, {vr(MK+2*i,2)}")
    a("s_branch A_go1\nA_go0:")
    ts(0)
    a(tmf(0, 0))
    a("A_go1:")
    wl = [f"ds_write_b128 v1, {vr(MA,4)} offset:{LM}", f"ds_write_b128 v113, {vr(MA+4,4)} offset:{LM}", "v_lshlrev_b32 v3, 3, v1"]
    for t in range(1, 6):
        if t <= 3: a(wl[t-1])
        a(tmf(t, 0))
    a("s_waitcnt lgkmcnt(0)\ns_barrier")
    a(f"ds_read_b128 {vr(MA+8,4)}, v{MA+8} offset:{LM}")
    a(tmf(6, 0))
    for t in range(7):
        if t < 4: a(f"ds_read_b128 {vr(MA+12+4*t,4)}, v{MA+12+4*t} offset:{LM}")
        if t == 4: a("s_cmp_lg_u32 s58, 0\ns_cselect_b64 exec, -1, 1\nglobal_load_dword v3, v3, s[38:39] sc1\ns_mov_b64 exec, -1")
        a(tmf(t, 1))
    a("s_waitcnt lgkmcnt(4)")
    for t in range(7): a(tmf(t, 2))
    a("s_waitcnt lgkmcnt(0) vmcnt(1)")
    SA = 8
    cv = lambda d, x, y: f"v_cvt_pk_bf16_f32 v{d}, v{x}, v{y}"
    def cvt4(b): return [cv(b+i, b+2*i, b+2*i+1) for i in range(4)]
    def tr(d, s): return f"v_mfma_f32_16x16x32_bf16 {vr(d,4)}, {vr(s,4)}, v[116:119], 0"
    def smf(kt, s):
        kb = (MK if kt == 0 else XK + 16*(kt-1)) + 8*s
        return f"v_smfmac_f32_16x16x64_bf16 {vr(SA+4*kt,4)}, {vr(36 if s == 0 else 52,4)}, {vr(kb,8)}, v4"
    z = [f"v_mov_b64 {vr(SA+2*i,2)}, 0" for i in range(6)]
    ror8 = lambda d, x: f"v_mov_b32_dpp v{d}, v{x} row_ror:8 row_mask:0xf bank_mask:0xf"
    M = tmf; c45 = cvt4(52); c01 = cvt4(36); c23 = cvt4(44)
    wr = lambda kt: f"ds_write_b128 v114, {vr(SA+4*kt,4)} offset:{1024*kt}"
    sw = ["\n".join(f"ds_read2_b32 {vr(MK+4*q+2*e,2)}, {('v5','v5','v104','v6')[q]} offset0:{128*(q==1)+e} offset1:{128*(q==1)+e+32}" for e in (1, 0)) for q in range(4)]
    seq = [M(6,3), sw[0], M(4,3), sw[1], M(6,4), sw[2], M(5,3), sw[3], M(6,5), z[0], M(4,4), z[1], M(6,6), z[2], M(5,4), z[3], M(4,5), cv(60,60,61), M(5,5), cv(61,62,63),
           M(4,6), ror8(62,60), M(5,6), ror8(63,61), M(0,3), tr(16,60), c45[0], M(1,3), c45[1], M(0,4), c45[2], M(1,4), c45[3],
           M(0,5), tr(56,52), cv(54,16,17), M(1,5), cv(55,18,19), M(0,6), z[4], M(1,6), z[5], M(2,3), cv(52,56,57), M(2,4), cv(53,58,59),
           M(2,5), c01[0], M(3,3), c01[1], M(2,6), c01[2], M(3,4), c01[3], M(3,5), tr(40,36), c23[0], M(3,6), c23[1],
           "s_waitcnt lgkmcnt(0)", smf(0,1), cv(36,40,41), smf(1,1), cv(37,42,43), c23[2], c23[3], tr(48,44), smf(2,1),
           cv(38,48,49), cv(39,50,51), smf(0,0), smf(1,0), smf(2,0), "v_mov_b64 v[24:25], 0", wr(0), wr(1), wr(2)]
    n0 = a.nops
    for x in seq: a(x)
    print("A seq nops", a.nops - n0)
    ts(1)
    a(f"""
    s_waitcnt lgkmcnt(0)
    s_barrier
    {"s_memtime s[64:65]" if PROF else ""}
    {"s_waitcnt lgkmcnt(0)" if PROF else ""}
    ds_read2st64_b64 v[8:11], v115 offset0:0 offset1:1
    ds_read2st64_b64 v[12:15], v115 offset0:6 offset1:7
    ds_read2st64_b64 v[16:19], v115 offset0:12 offset1:13
    ds_read2st64_b64 v[20:23], v115 offset0:18 offset1:19
    s_waitcnt lgkmcnt(3)
    v_pk_add_f32 v[8:9], v[8:9], v[10:11]
    s_waitcnt lgkmcnt(2)
    v_pk_add_f32 v[12:13], v[12:13], v[14:15]
    s_waitcnt lgkmcnt(1)
    v_pk_add_f32 v[16:17], v[16:17], v[18:19]
    v_pk_add_f32 v[8:9], v[8:9], v[12:13]
    s_waitcnt lgkmcnt(0)
    v_pk_add_f32 v[20:21], v[20:21], v[22:23]
    v_pk_add_f32 v[8:9], v[8:9], v[16:17]
    v_pk_add_f32 v[8:9], v[8:9], v[20:21]
    A_exp:
    s_mov_b64 exec, s[46:47]
    v_exp_f32 v24, v8
    v_exp_f32 v25, v9
    s_mov_b64 exec, -1
    """)
    def red(op, s0, s1):
        for k, m in enumerate(("row_ror:8 row_mask:0xf", "row_ror:4 row_mask:0xf", "row_ror:2 row_mask:0xf", "row_ror:1 row_mask:0xf", "row_bcast:15 row_mask:0xa", "row_bcast:31 row_mask:0xc")):
            for d, x in ((26, s0), (27, s1)):
                x = x if k == 0 else d
                a(f"{op} v{d}, v{x}, v{x} {m} bank_mask:0xf")
        a("v_readlane_b32 s80, v26, 63\nv_readlane_b32 s81, v27, 63")
    red("v_add_f32_dpp", 24, 25)
    a(f"""
    v_rcp_f32 v26, s80
    v_rcp_f32 v27, s81
    s_sub_u32 s80, s80, {0x12800000}
    s_sub_u32 s81, s81, {0x12800000}
    s_max_u32 s80, s80, s81
    s_cmp_ge_u32 s80, {0x6c800000 - 0x12800000 if not o.get('fb') else 1}
    s_cbranch_scc1 A_fb
    A_st:
    v_mul_f32_e64 v24, v24, v26 clamp
    v_mul_f32_e64 v25, v25, v27 clamp
    s_cmp_lg_u32 s23, 0
    v_permlane32_swap_b32 v24, v25
    s_mov_b64 exec, s[46:47]
    v_cvt_pk_bf16_f32 v24, v24, v25
    """)
    st_mode(a, ["global_store_dword v112, v24, s[36:37]"])
    ts(3); acc(4)
    a(f"""
    s_mov_b64 exec, -1
    s_add_u32 s40, s40, 1
    s_cmp_ge_u32 s40, {NSTEP}
    s_cbranch_scc1 CH_end
    """)
    add64(a, 38, 38, "s54"); add64(a, 30, 30, 7168); add64(a, 36, 36, 10240); add64(a, 32, 32, 28672)
    if not o.get("sl"): a("s_cmp_eq_u32 s55, 64\ns_cselect_b32 s58, 0, 1")
    else: a("s_add_u32 s59, s59, s55\ns_load_dword s58, s[18:19], s59 glc")
    xkeys()
    a("s_branch A_top")
    a("A_fb:\ns_cmp_lg_u32 s42, 0\ns_cbranch_scc1 A_st\ns_mov_b32 s42, 1")
    cnt(77)
    red("v_max_f32_dpp", 8, 9)
    a("v_subrev_f32 v8, s80, v8\nv_subrev_f32 v9, s81, v9\ns_branch A_exp")
    a("CH_end:")
    pdump(256)
    K.stamp(5)
    a("s_endpgm")
    a("ROLE_HB:\ns_mov_b32 s43, 0\ns_mov_b32 s26, s21\nLOAD_B:")
    load_B(K)
    idx_setup(a, "v4")
    a(f"""
    s_mul_i32 s27, s3, 28672
    v_add_u32 v5, s27, v1
    s_cmp_eq_u32 s43, 0
    s_cbranch_scc1 HB_start
    v_and_b32 v8, 15, v0                 ; c / m
    v_lshrrev_b32 v9, 4, v0              ; g
    v_lshrrev_b32 v10, 3, v8             ; hh
    v_and_b32 v11, 7, v8                 ; i
    s_lshl_b32 s27, s3, 11
    v_lshlrev_b32 v6, 9, v10
    v_lshl_add_u32 v6, v11, 4, v6
    v_lshl_add_u32 v6, v9, 7, v6
    v_add_u32 v6, s27, v6                ; P x addr
    v_and_b32 v12, 2, v9
    v_add_u32 v12, v12, v10
    v_lshlrev_b32 v7, 7, v12
    v_lshl_add_u32 v7, v11, 4, v7
    s_lshl_b32 s27, s3, 9
    s_add_u32 s27, s27, 8192
    v_add_u32 v7, s27, v7
    v_mul_u32_u24 v168, 640, v9
    v_lshrrev_b32 v12, 2, v8
    v_lshl_add_u32 v168, v12, 5, v168
    v_and_b32 v12, 3, v8
    v_lshl_add_u32 v168, v12, 2, v168
    s_mul_i32 s27, s3, 2560
    s_add_u32 s27, s27, 114688
    v_add_u32 v168, s27, v168
    s_lshl_b32 s27, s3, 2
    v_add_u32 v12, s27, v9               ; i
    v_mul_u32_u24 v169, 160, v12
    v_lshl_add_u32 v169, v8, 3, v169
    v_add_u32 v169, 114688, v169
    s_and_b32 s27, s26, 1
    s_lshl_b32 s27, s27, 9
    s_lshr_b32 s28, s26, 1
    s_lshl_b32 s28, s28, 10
    s_add_u32 s27, s27, s28
    v_lshlrev_b32 v170, 8, v10           ; (u>>3)*256
    v_and_b32 v13, 1, v8
    v_lshl_add_u32 v170, v13, 7, v170
    v_lshl_add_u32 v170, v12, 4, v170
    v_lshrrev_b32 v13, 1, v11
    v_lshl_add_u32 v170, v13, 2, v170
    v_add_u32 v170, s27, v170
    """)
    rot_half()
    a(f"""
    v_add_u32 v164, s60, v1
    v_add_u32 v165, s61, v1
    v_add_u32 v166, 0x20000, v164
    v_add_u32 v167, 0x20000, v165
    s_lshl_b32 s27, s26, 2
    v_mov_b32 v172, s27
    v_mov_b32 v174, 0
    s_lshl_b32 s27, s26, 15
    s_lshl_b32 s28, s3, 13
    s_add_u32 s27, s27, s28
    s_add_u32 s27, s27, {VO + 4096}
    s_mov_b32 s40, 0
    s_mov_b32 s44, 0x80008000
    s_mov_b64 s[56:57], 0
    """)
    add64(a, 32, 12, "s27"); add64(a, 30, 12, MX); add64(a, 34, 12, MX + 7168); add64(a, 52, 12, MY); add64(a, 36, 12, PS)
    team_wait()
    UA, WT_, VB, P, OA = 36, 68, 84, 148, 116
    def zeroB():
        for i in range(16): a(f"v_mov_b64 {vr(UA+2*i,2)}, 0")
        for i in range(4): a(f"v_mov_b64 {vr(OA+2*i,2)}, 0")
    zeroB(); pinit(); share_a("v166")
    a(f"B_top:\ns_mov_b32 s41, {SPIN}\nB_poll:")
    cnt(75)
    K.bails.add(5)
    own("v164", "v165", "B_poll", 5)
    ts(0, True)
    a(f"""
    v_readfirstlane_b32 s27, v174
    s_cmp_eq_u32 s27, 0
    s_cbranch_scc1 B_voflag
    B_vok:
    """)
    a(f"ds_write_b128 v166, {vr(MA,4)}\nds_write_b128 v167, {vr(MA+4,4)}")
    P1 = 124
    def ldp(b):
        a(f"""
        global_load_dwordx4 {vr(b,4)}, v6, s[36:37] sc1
        global_load_dwordx4 {vr(b+4,4)}, v6, s[36:37] offset:1024 sc1
        global_load_dwordx4 {vr(b+8,4)}, v7, s[36:37] sc1
        """)
    ex = ["v_add_u32 v172, 64, v172"] + [f"global_load_dwordx4 {vr(VB+4*i,4)}, v1, s[32:33] offset:{1024*i-4096} sc1" for i in range(0 if o.get("novo") else 8)]
    if not o.get("noy"): ex += ["global_load_dword v174, v172, s[18:19] sc1", "s_mov_b64 exec, s[56:57]\nglobal_store_dwordx4 v164, v[8:11], s[52:53] sc1\nglobal_store_dwordx4 v165, v[12:15], s[52:53] sc1\ns_mov_b64 exec, -1"]
    def hook():
        a("s_barrier")
        for jj in range(2, 7): a(f"ds_read_b128 {vr(MA+4*jj,4)}, v{MA+4*jj}")
    u_phase(a, MA, UA, WT_, "v5", hook, ex)
    ldp(P)
    for t in range(2):
        for hp in range(2):
            for rp in range(2):
                for hh in range(2):
                    u = UA + ((2*hp+hh)*2+t)*4 + 2*rp
                    a(cv(WT_ + 8*t + 4*hp + 2*rp + hh, u, u+1))
    a(f"s_sleep {o.get('stgb', 2)}")
    ts(1)
    def chkp(b):
        sx = lambda hp, t: f"v_smfmac_f32_16x16x64_bf16 {vr(OA+4*t,4)}, {vr(b+4*hp,4)}, {vr(VB+(hp*2+t)*8,8)}, v4"
        sm = lambda t: f"v_smfmac_f32_16x16x64_bf16 {vr(OA+4*t,4)}, {vr(b+8,4)}, {vr(WT_+8*t,8)}, v4"
        a(f"""
        s_waitcnt vmcnt(5)
        {sx(0,0)}
        v_or3_b32 v2, v{b}, v{b+1}, v{b+2}
        {sx(0,1)}
        s_waitcnt vmcnt(4)
        v_or3_b32 v3, v{b+3}, v{b+4}, v{b+5}
        {sx(1,0)}
        v_or3_b32 v2, v2, v{b+6}, v{b+7}
        {sx(1,1)}
        s_waitcnt vmcnt(3)
        v_or3_b32 v3, v3, v{b+8}, v{b+9}
        {sm(0)}
        v_or3_b32 v2, v2, v{b+10}, v{b+11}
        {sm(1)}
        v_or_b32 v2, v2, v3
        v_and_b32 v2, s44, v2
        v_cmp_ne_u32 vcc, 0, v2
        """)
    def zo():
        for i in range(4): a(f"v_mov_b64 {vr(OA+2*i,2)}, 0")
    ldp(P1)
    a("B_pp:")
    cnt(76)
    chkp(P)
    a("s_cbranch_vccz B_go")
    ldp(P); zo(); chkp(P1)
    a("s_cbranch_vccz B_go")
    ldp(P1); zo()
    a("s_sub_u32 s41, s41, 1\ns_cbranch_scc0 B_pp\ns_branch BAIL_5\nB_go:")
    ts(2)
    a("s_nop 3")
    for r in range(4): a(f"ds_write2_b32 v168, v{OA+r}, v{OA+4+r} offset0:{40*r} offset1:{40*r+4}")
    a(f"""
    s_add_u32 s40, s40, 1
    s_waitcnt lgkmcnt(0)
    s_barrier
    s_cmp_ge_u32 s3, 2
    s_cbranch_scc1 B_nopub
    """)
    for p in range(8): a(f"ds_read_b64 {vr(8+2*p,2)}, v169 offset:{1280*p}")
    a(f"""
    s_cmp_lg_u32 s23, 0
    s_waitcnt lgkmcnt(6)
    v_pk_add_f32 v[8:9], v[8:9], v[10:11]
    s_waitcnt lgkmcnt(4)
    v_pk_add_f32 v[12:13], v[12:13], v[14:15]
    s_waitcnt lgkmcnt(2)
    v_pk_add_f32 v[16:17], v[16:17], v[18:19]
    v_pk_add_f32 v[8:9], v[8:9], v[12:13]
    s_waitcnt lgkmcnt(0)
    v_pk_add_f32 v[20:21], v[20:21], v[22:23]
    v_pk_add_f32 v[8:9], v[8:9], v[16:17]
    v_pk_add_f32 v[8:9], v[8:9], v[20:21]
    v_cvt_pk_bf16_f32 v175, v8, v9
    v_min_u32 v175, -2, v175
    """)
    st_mode(a, ["global_store_dword v170, v175, s[34:35]"])
    a("B_nopub:")
    ts(3); acc(4)
    add64(a, 52, 52, 7168)
    a(f"s_cmp_ge_u32 s40, {NSTEP}\ns_cbranch_scc1 B_end")
    add64(a, 30, 30, 7168); add64(a, 34, 34, 7168); add64(a, 36, 36, 10240); add64(a, 32, 32, 14*32768)
    zeroB(); share_a("v166")
    a(f"""
    s_cmp_eq_u32 s26, 0
    s_cselect_b64 s[56:57], -1, 0
    s_branch B_top
    B_voflag:
    {"s_add_u32 s77, s77, 1" if PROF else ""}
    global_load_dword v174, v172, s[18:19] sc1
    s_sub_u32 s41, s41, 1
    s_cbranch_scc1 BAIL_5
    s_waitcnt vmcnt(0)
    v_readfirstlane_b32 s27, v174
    s_cmp_lg_u32 s27, 0
    s_cbranch_scc1 B_vok
    s_sleep 2
    s_branch B_voflag
    B_end:
    """)

    pdump(768)
    a(f"""
    s_cmp_ge_u32 s3, 2
    s_cbranch_scc1 K2_end
    global_store_dword v170, v175, s[52:53] sc1
    s_endpgm
    """)
    for x in LATE: a(x)
    LATE.clear()

NQ = 4
def xdma(a, lbase, sreg):
    a(f"s_mul_i32 s58, {sreg}, 28672\ns_mul_i32 s59, s3, 7168\ns_add_u32 m0, s59, {lbase}\ns_add_u32 s58, s58, {XI}")
    add64(a, 56, 12, "s58")
    for i in range(4): a(f"global_load_lds_dwordx4 v6, s[56:57] offset:{1024*i}")
    a("s_add_u32 m0, m0, 4096"); add64(a, 56, 56, 4096)
    for i in range(3): a(f"global_load_lds_dwordx4 v6, s[56:57] offset:{1024*i}")
def set_flag(a, sreg):
    L = a.newlab("SF")
    a(f"""
    s_waitcnt vmcnt(0)
    s_barrier
    s_cmp_lg_u32 s3, 0
    s_cbranch_scc1 {L}
    s_mov_b64 exec, 1
    v_mov_b32 v2, 1
    v_mov_b32 v3, {sreg}
    global_store_dword v3, v2, s[18:19] sc1
    s_mov_b64 exec, -1
    {L}:
    """)
def gen_hold(K):
    a = K.a
    cv = lambda d, x, y: f"v_cvt_pk_bf16_f32 v{d}, v{x}, v{y}"
    mf = lambda d, x, y, c: f"v_mfma_f32_16x16x32_bf16 {d}, {x}, {y}, {c}"
    def v6setup():
        a("""
        s_mul_i32 s27, s3, 7168
        v_add_u32 v6, s27, v1
        s_mov_b32 s40, s29
        """)
    XL = 114688
    a("HB_start:")
    v6setup()
    xdma(a, XL, "s40")
    a(f"v_add_u32 v7, {XL}, v1\ns_waitcnt vmcnt(0)\ns_barrier\nHB_vo:")
    AC = 36
    def rd(kk):
        b = 8 + 16*(kk & 1)
        a(f"""
        ds_read_b128 {vr(b,4)}, v7 offset:{kk*2048}
        ds_read_b128 {vr(b+4,4)}, v7 offset:{kk*2048+1024}
        ds_read_b128 {vr(b+8,4)}, v5 offset:{kk*1024}
        ds_read_b128 {vr(b+12,4)}, v5 offset:{(14+kk)*1024}
        """)
    AC = 40
    rd(0); rd(1)
    for kk in range(14):
        b = 8 + 16*(kk & 1)
        a(f"s_waitcnt lgkmcnt({4 if kk < 13 else 0})")
        for hl in range(4):
            for t in range(2):
                w = wB(((hl*2+t)*14+kk)*4) if hl < 3 else vr(b+8+4*t, 4)
                for rt in range(2):
                    d = vr(AC + ((hl*2+t)*2+rt)*4, 4)
                    a(mf(d, vr(b+4*rt,4), w, d if kk else 0))
        if kk + 2 < 14: rd(kk+2)
    a(f"""
    s_barrier
    s_add_u32 s41, s40, {NQ}
    s_cmp_ge_u32 s41, 64
    s_cbranch_scc1 HB_nodma
    """)
    xdma(a, XL, "s41")
    a(f"""
    HB_nodma:
    s_mul_i32 s27, s40, 14
    s_add_u32 s27, s27, s26
    s_lshl_b32 s27, s27, 15
    s_lshl_b32 s28, s3, 13
    s_add_u32 s27, s27, s28
    s_add_u32 s27, s27, {VO + 4096}
    """)
    add64(a, 32, 12, "s27")
    for hp in range(2):
        for t in range(2):
            for rt in range(2):
                n = (hp*2+t)*2+rt; d = 104 + 4*n
                h0 = AC + (2*hp*2+t)*8 + 2*rt; h1 = h0 + 16
                for x in (cv(d, h0, h0+4), cv(d+1, h1, h1+4), cv(d+2, h0+1, h0+5), cv(d+3, h1+1, h1+5)): a(x)
                a(f"global_store_dwordx4 v1, {vr(d,4)}, s[32:33] offset:{1024*n-4096} sc1")
    a(f"s_lshl_b32 s27, s40, 6\ns_lshl_b32 s28, s26, 2\ns_add_u32 s27, s27, s28")
    set_flag(a, "s27")
    a(f"""
    s_mov_b32 s40, s41
    s_cmp_lt_u32 s40, 64
    s_cbranch_scc1 HB_vo
    """)
    K.stamp(6)
    MA, UA, WT_, VB, PXR, PMR, OA = 8, 36, 68, 84, 116, 148, 8
    RB = XL
    a(f"""
    s_mov_b32 s40, s29
    v_lshlrev_b32 v7, 3, v0
    s_lshl_b32 s27, s3, 12
    s_add_u32 s27, s27, {RB}
    v_add_u32 v168, s27, v1
    s_lshl_b32 s27, s3, 11
    s_add_u32 s27, s27, {RB}
    v_add_u32 v169, s27, v1
    v_and_b32 v2, 15, v0
    v_lshrrev_b32 v3, 4, v0
    v_mul_u32_u24 v170, 1792, v2
    v_lshl_add_u32 v170, v3, 4, v170
    s_mul_i32 s27, s3, {16*1792}
    s_lshl_b32 s28, s26, 6
    s_add_u32 s27, s27, s28
    s_add_u32 s27, s27, 896
    v_add_u32 v170, s27, v170
    HB_out:
    s_mul_i32 s27, s40, 14
    s_add_u32 s27, s27, s26
    s_lshl_b32 s27, s27, 15
    s_lshl_b32 s28, s3, 13
    s_add_u32 s27, s27, s28
    s_add_u32 s27, s27, {VO + 4096}
    """)
    add64(a, 32, 12, "s27")
    a(f"s_mul_i32 s27, s40, 7168\ns_add_u32 s27, s27, {MY + 3072}")
    add64(a, 30, 12, "s27")
    a(f"""
    s_lshl_b32 s27, s40, 4
    s_lshl_b32 s28, s3, 2
    s_add_u32 s27, s27, s28
    s_lshl_b32 s28, s27, 2
    s_add_u32 s28, s28, {F_PX}
    v_mov_b32 v171, s28
    s_mul_i32 s27, s27, 3072
    s_add_u32 s27, s27, {PX + 3072}
    """)
    add64(a, 34, 12, "s27"); add64(a, 36, 34, 6144)
    a(f"s_mul_i32 s27, s40, {32*1792}")
    add64(a, 38, 14, "s27")
    for i in range(8): a(f"global_load_dwordx4 {vr(VB+4*i,4)}, v1, s[32:33] offset:{1024*i-4096} sc1")
    for i in range(16): a(f"v_mov_b64 {vr(UA+2*i,2)}, 0")
    a(f"s_mov_b32 s41, {SPIN}\nHB_pm:")
    for j in range(7): a(f"global_load_dwordx4 {vr(MA+4*j,4)}, v1, s[30:31] offset:{1024*j-3072} sc1")
    K.bails.add(6)
    a("s_sub_u32 s41, s41, 1\ns_cbranch_scc1 BAIL_6\ns_waitcnt vmcnt(0)")
    full_check(a, range(MA, MA+28), "v2")
    a("s_cbranch_vccz HB_pm_ok\ns_sleep 8\ns_branch HB_pm\nHB_pm_ok:")
    u_phase(a, MA, UA, WT_, "v5")
    for n in range(4):
        b = VB + 8*n
        for x, y in ((1, 2), (2, 4), (3, 6), (5, 6)): a(f"v_swap_b32 v{b+x}, v{b+y}")
    for t in range(2):
        for hp in range(2):
            d = WT_ + 8*t + 4*hp
            h0 = UA + (4*hp+t)*4; h1 = UA + (4*hp+2+t)*4
            for x in (cv(d, h0, h0+1), cv(d+1, h0+2, h0+3), cv(d+2, h1, h1+1), cv(d+3, h1+2, h1+3)): a(x)
    a(f"""
    HB_pf:
    global_load_dwordx4 v[160:163], v171, s[18:19] sc1
    s_sub_u32 s41, s41, 1
    s_cbranch_scc1 BAIL_6
    s_waitcnt vmcnt(0)
    v_and_b32 v2, v160, v161
    v_and_b32 v3, v162, v163
    v_and_b32 v2, v2, v3
    v_cmp_eq_u32 vcc, 0, v2
    s_cbranch_vccz HB_pf_ok
    s_sleep 4
    s_branch HB_pf
    HB_pf_ok:
    """)
    for hl in range(4):
        for rt in range(2):
            base = "s[34:35]" if hl < 2 else "s[36:37]"
            of = ((hl & 1)*2 + rt)*1536 - 3072
            a(f"global_load_dwordx4 {vr(PXR+(hl*2+rt)*4,4)}, v1, {base} offset:{of} sc1")
            a(f"global_load_dwordx2 {vr(PMR+((hl>>1)*2+rt)*4+2*(hl&1),2)}, v7, {base} offset:{of+1024} sc1")
    for hp in range(2):
        a(f"s_waitcnt vmcnt({8 if hp == 0 else 0})")
        for hh in range(2):
            for t in range(2):
                for rt in range(2):
                    d = vr(OA + (rt*2+t)*4, 4)
                    a(mf(d, vr(VB+(hp*2+t)*8+4*hh, 4), vr(PXR+((2*hp+hh)*2+rt)*4, 4), d if (hp or hh) else 0))
        for t in range(2):
            for rt in range(2):
                d = vr(OA + (rt*2+t)*4, 4)
                a(mf(d, vr(WT_+8*t+4*hp, 4), vr(PMR+(hp*2+rt)*4, 4), d))
    for n in range(4): a(f"ds_write_b128 v168, {vr(OA+4*n,4)} offset:{1024*n}")
    a("s_waitcnt lgkmcnt(0)\ns_barrier\ns_cmp_ge_u32 s3, 2\ns_cbranch_scc1 HB_ost")
    for w in range(4):
        for t in range(2): a(f"ds_read_b128 {vr(8+(w*2+t)*4,4)}, v169 offset:{4096*w+1024*t}")
    for w in range(1, 4):
        a(f"s_waitcnt lgkmcnt({6-2*w})")
        for i in range(4): a(f"v_pk_add_f32 {vr(8+2*i,2)}, {vr(8+2*i,2)}, {vr(8+8*w+2*i,2)}")
    for i in range(4): a(cv(16+i, 8+2*i, 9+2*i))
    a(f"""
    global_store_dwordx4 v170, v[16:19], s[38:39]
    HB_ost:
    s_barrier
    s_add_u32 s40, s40, {NQ}
    s_cmp_lt_u32 s40, 64
    s_cbranch_scc1 HB_out
    """)
    K.stamp(7)
    a("s_endpgm")
    a("HA_start:")
    v6setup()
    xdma(a, 0, "s40")
    RB = 65536
    a(f"""
    v_and_b32 v2, 15, v0                 ; key/row
    v_lshrrev_b32 v3, 4, v0              ; g
    s_mul_i32 s27, s3, 14
    v_lshl_add_u32 v8, v3, 1, s27        ; ci a
    v_lshlrev_b32 v9, 1, v3
    v_min_u32 v9, 5, v9
    v_add3_u32 v9, v9, s27, 8            ; ci b
    v_and_b32 v10, 1, v3
    v_lshlrev_b32 v10, 1, v10
    v_add3_u32 v10, v10, s27, 9          ; ci c
    v_and_b32 v11, 7, v2
    v_lshlrev_b32 v11, 4, v11
    v_lshrrev_b32 v12, 1, v3
    """)
    for ci, d, m in ((8, 5, 118), (9, 7, 119), (10, 116, 117)):
        a(f"""
        v_lshrrev_b32 v14, 2, v{ci}
        v_and_b32 v15, 3, v{ci}
        v_lshlrev_b32 v{d}, 11, v14
        v_lshl_add_u32 v{d}, v15, 8, v{d}
        v_lshl_add_u32 v{d}, v2, 4, v{d}
        v_lshrrev_b32 v14, 1, v{ci}
        v_lshl_add_u32 v{m}, v14, 8, v11
        v_and_b32 v14, 1, v{ci}
        v_lshl_add_u32 v{m}, v14, 3, v{m}
        """)
    a(f"""
    v_lshl_add_u32 v116, v12, 2, v116
    v_lshl_add_u32 v117, v12, 7, v117
    s_mul_i32 s27, s3, 6144
    s_add_u32 s27, s27, {RB}
    v_add_u32 v4, s27, v1
    s_lshl_b32 s27, s3, 4
    v_lshlrev_b32 v3, 2, v3
    v_sub_u32 v0, v2, v3
    v_add_u32 v0, s27, v0
    s_mov_b32 s42, 0
    s_mov_b32 s45, {f32(-1e30)}
    s_waitcnt vmcnt(0)
    s_barrier
    HA_job:
    s_add_u32 s41, s40, {NQ}
    s_xor_b32 s43, s42, 32768
    s_cmp_ge_u32 s41, 64
    s_cbranch_scc1 HA_nodma
    """)
    xdma(a, "s43", "s41")
    a("HA_nodma:\nv_add_u32 v2, s42, v1")
    QA, XB = 8, 64
    def rdx(kk):
        b = XB + 8*(kk & 1)
        a(f"ds_read_b128 {vr(b,4)}, v2 offset:{kk*2048}\nds_read_b128 {vr(b+4,4)}, v2 offset:{kk*2048+1024}")
    rdx(0); rdx(1)
    for kk in range(14):
        b = XB + 8*(kk & 1)
        a(f"s_waitcnt lgkmcnt({2 if kk < 13 else 0})")
        for t in range(7):
            for rt in range(2):
                d = vr(QA + (rt*7+t)*4, 4)
                a(mf(d, wA((t*14+kk)*4), vr(b+4*rt,4), d if kk else 0))
        if kk + 2 < 14: rdx(kk+2)
    QO = 64
    for rt in range(2):
        q = QA + rt*28; d = QO + 14*rt
        for p in range(3):
            t0 = q + 8*p; t1 = t0 + 4
            for x in (cv(d+4*p, t0, t0+1), cv(d+4*p+1, t1, t1+1), cv(d+4*p+2, t0+2, t0+3), cv(d+4*p+3, t1+2, t1+3)): a(x)
        a(cv(d+12, q+24, q+25)); a(cv(d+13, q+26, q+27))
    HO = 8
    a(f"s_mul_i32 s27, s40, 7168\ns_add_u32 s27, s27, {MY}")
    add64(a, 30, 12, "s27")
    a(f"s_mov_b32 s44, {SPIN}")
    def ldm():
        m = HO + 32
        a(f"""
        global_load_dwordx2 {vr(m,2)}, v118, s[30:31] sc1
        global_load_dwordx2 {vr(m+2,2)}, v118, s[30:31] offset:128 sc1
        global_load_dwordx2 {vr(m+4,2)}, v118, s[30:31] offset:8 sc1
        global_load_dwordx2 {vr(m+6,2)}, v118, s[30:31] offset:136 sc1
        global_load_dwordx2 {vr(m+8,2)}, v119, s[30:31] sc1
        global_load_dwordx2 {vr(m+10,2)}, v119, s[30:31] offset:128 sc1
        global_load_dwordx2 {vr(m+12,2)}, v117, s[30:31] sc1
        """)
    ldm()
    a("v_add_u32 v2, s42, v5\nv_add_u32 v3, s42, v7\nv_add_u32 v62, s42, v116")
    for kt in range(2):
        h = HO + 16*kt
        a(f"""
        ds_read_b128 {vr(h,4)}, v2 offset:{1024*kt}
        ds_read_b128 {vr(h+4,4)}, v2 offset:{1024*kt+256}
        ds_read_b128 {vr(h+8,4)}, v3 offset:{1024*kt}
        ds_read_b32 v{h+12}, v62 offset:{1024*kt}
        ds_read_b32 v{h+13}, v62 offset:{1024*kt+8}
        """)
    SA = 92
    def stile(kt):
        h = HO + 16*kt
        for p in range(3):
            for rt in range(2):
                d = vr(SA + (rt*3+kt)*4, 4)
                a(mf(d, vr(h+4*p,4), vr(QO+14*rt+4*p,4), d if p else 0))
        for rt in range(2):
            d = vr(SA + (rt*3+kt)*4, 4)
            a(f"v_mfma_f32_16x16x16_bf16 {d}, {vr(h+12,2)}, {vr(QO+14*rt+12,2)}, {d}")
    a("s_waitcnt lgkmcnt(5)"); stile(0)
    a("s_waitcnt lgkmcnt(0)"); stile(1)
    K.bails.add(7)
    a("HA_pm:\ns_waitcnt vmcnt(0)")
    full_check(a, range(HO+32, HO+46), "v2")
    a("s_cbranch_vccz HA_pm_ok\ns_sleep 8")
    ldm()
    a("s_sub_u32 s44, s44, 1\ns_cbranch_scc1 BAIL_7\ns_branch HA_pm\nHA_pm_ok:")
    for q in range(3): a(f"v_swap_b32 v{HO+33+4*q}, v{HO+34+4*q}")
    stile(2)
    for n in range(6): a(f"ds_write_b128 v4, {vr(SA+4*n,4)} offset:{1024*n}")
    a(f"""
    s_lshl_b32 s27, s40, 4
    s_add_u32 s27, s27, s26
    s_lshl_b32 s46, s27, 2
    s_add_u32 s46, s46, {F_PX}
    s_lshl_b32 s27, s27, 1
    s_add_u32 s27, s27, s3
    s_mul_i32 s27, s27, 1536
    s_add_u32 s27, s27, {PX}
    """)
    add64(a, 32, 12, "s27")
    a(f"""
    s_mul_i32 s27, s3, 3072
    s_add_u32 s27, s27, {RB}
    v_add_u32 v2, s27, v1
    s_waitcnt lgkmcnt(0)
    s_barrier
    s_cmp_ge_u32 s3, 2
    s_cbranch_scc1 HA_sm_done
    """)
    for w in range(4):
        for kt in range(3): a(f"ds_read_b128 {vr(8+(w*3+kt)*4,4)}, v2 offset:{6144*w+1024*kt}")
    for w in range(1, 4):
        a(f"s_waitcnt lgkmcnt({9-3*w})")
        for i in range(6): a(f"v_pk_add_f32 {vr(8+2*i,2)}, {vr(8+2*i,2)}, {vr(8+12*w+2*i,2)}")
    a("v_mov_b32 v3, s45")
    for i in range(8):
        a(f"v_cmp_le_i32 vcc, {(i & 3) + 16*(i >> 2)}, v0\nv_cndmask_b32 v{8+i}, v3, v{8+i}, vcc")
    a("v_max3_f32 v2, v8, v9, v10")
    for i in range(11, 19, 2): a(f"v_max3_f32 v2, v2, v{i}, v{i+1}")
    a("v_max_f32 v2, v2, v19")
    def xred(op):
        for sw in ("v_permlane32_swap_b32", "v_permlane16_swap_b32"):
            a(f"v_mov_b32 v3, v2\n{sw} v2, v3\n{op} v2, v2, v3")
    xred("v_max_f32")
    for i in range(8, 20): a(f"v_sub_f32 v{i}, v{i}, v2")
    for i in range(8, 20): a(f"v_exp_f32 v{i}, v{i}")
    a("v_add_f32 v2, v16, v17\nv_add_f32 v3, v18, v19\nv_add_f32 v2, v2, v3\nv_mul_f32 v2, 0.5, v2")
    for i in range(8, 16): a(f"v_add_f32 v2, v2, v{i}")
    xred("v_add_f32")
    a("v_rcp_f32 v2, v2")
    for i in range(8, 20): a(f"v_mul_f32 v{i}, v{i}, v2")
    for i in range(4): a(cv(20+i, 8+i, 12+i))
    a(cv(24, 16, 17)); a(cv(25, 18, 19))
    a("""
    v_lshrrev_b32 v3, 1, v1
    global_store_dwordx4 v1, v[20:23], s[32:33] sc1
    global_store_dwordx2 v3, v[24:25], s[32:33] offset:1024 sc1
    HA_sm_done:
    """)
    set_flag(a, "s46")
    a(f"""
    s_mov_b32 s40, s41
    s_mov_b32 s42, s43
    s_cmp_lt_u32 s40, 64
    s_cbranch_scc1 HA_job
    """)
    K.stamp(8)
    a("s_endpgm")
```

```python
import re, struct
TRANS = ("v_exp_f32","v_log_f32","v_rcp_f32","v_rsq_f32","v_sqrt_f32","v_sin_f32","v_cos_f32")
def f32(x): return struct.unpack("<I", struct.pack("<f", float(x)))[0]
def regs_of(op):
    op = op.strip()
    for pre in ("neg(", "abs("):
        if op.startswith(pre): op = op[len(pre):-1]
    op = op.lstrip("-").strip("|")
    m = re.fullmatch(r"([vas])\[(\d+):(\d+)\]", op)
    if m: return {(m.group(1), i) for i in range(int(m.group(2)), int(m.group(3)) + 1)}
    m = re.fullmatch(r"([vas])(\d+)", op)
    if m: return {(m.group(1), int(m.group(2)))}
    if op == "vcc": return {("s", "vcc")}
    if op == "m0": return {("s", "m0")}
    if op == "exec": return {("s", "exec")}
    return set()
class Ins:
    def __init__(self, text):
        self.text = text
        t = text.split(";")[0].strip()
        p = t.split(None, 1)
        self.mn = p[0]
        rest = p[1] if len(p) > 1 else ""
        ops = [o.strip() for o in rest.split(",")] if rest else []
        mods = ""
        if ops:
            last = ops[-1].split(None, 1)
            ops[-1] = last[0]
            mods = last[1] if len(last) > 1 else ""
        self.ops, self.mods = ops, mods
        mn = self.mn
        self.mfma = mn.startswith("v_mfma") or mn.startswith("v_smfmac")
        self.valu = mn.startswith("v_") and not self.mfma
        self.vmem = mn.startswith("global_") or mn.startswith("buffer_")
        self.ds = mn.startswith("ds_")
        self.salu = mn.startswith("s_")
        self.trans = mn.replace("_e32", "").replace("_e64", "") in TRANS
        self.dpp = ("row_" in mods or "quad_perm" in mods or "_dpp" in mn)
        self.perml = mn.startswith("v_permlane")
        self.rdl = mn.startswith("v_readfirstlane") or mn.startswith("v_readlane")
        R = [regs_of(o) for o in ops]
        self.w, self.r, self.c = set(), set(), set()
        self.passes = 0; self.wide = False; self.dma = False
        U = lambda l: set().union(*l) if l else set()
        if self.mfma:
            self.passes = 8 if "32x32" in mn else 4
            self.w = R[0]
            if mn.startswith("v_smfmac"): self.c = R[0]; self.r = R[1] | R[2] | R[3]
            else: self.c = R[3]; self.r = R[1] | R[2]
        elif self.valu:
            if mn.startswith("v_swap") or self.perml: self.w = U(R); self.r = U(R)
            else:
                self.w = R[0]; self.r = U(R[1:])
                if mn.startswith("v_fmac") or self.dpp: self.r |= R[0]
                if mn.startswith("v_cndmask") and len(ops) == 3: self.r |= {("s", "vcc")}
            if mn == "v_nop": self.w = set()
        elif self.vmem:
            self.dma = "_lds_" in mn or " lds" in (" " + mods)
            if "store" in mn:
                self.r = U(R); self.wide = mn.endswith("x4") or mn.endswith("x3")
                self.data = R[1] if mn.startswith("global_") else R[0]
            elif self.dma or mn in ("buffer_wbl2", "buffer_inv"): self.r = U(R)
            elif "atomic" in mn and "sc0" not in mods: self.r = U(R)
            else: self.w = R[0]; self.r = U(R[1:])
        elif self.ds:
            if "read" in mn or "permute" in mn or "swizzle" in mn or "_rtn" in mn: self.w = R[0]; self.r = U(R[1:])
            else: self.r = U(R)
        elif self.salu:
            if mn.startswith("s_cmp") or mn.startswith("s_cbranch") or mn in ("s_branch", "s_waitcnt", "s_barrier", "s_nop", "s_endpgm", "s_sleep", "s_setprio", "s_bitcmp1_b32", "s_bitcmp0_b32"): self.r = U(R)
            else: self.w = R[0] if R else set(); self.r = U(R[1:])
        self.states = 1
        if mn == "s_nop": self.states = int(ops[0]) + 1
def need(p, c):
    n = 0
    vw = {x for x in p.w if x[0] in "va"}; sw = {x for x in p.w if x[0] == "s"}
    if p.valu:
        if c.mfma and vw & (c.r | c.c): n = max(n, 2)
        if c.valu and (c.dpp or c.perml) and vw & c.r: n = max(n, 2)
        if c.rdl and vw & c.r: n = max(n, 1)
        if p.trans and not c.trans and vw & c.r: n = max(n, 1)
        if sw & c.r:
            if c.valu: n = max(n, 4 if c.mn.startswith("v_readlane") or c.mn.startswith("v_writelane") else 2)
            if c.vmem: n = max(n, 5)
    if p.mfma:
        big = p.passes == 8
        if c.mfma:
            if p.w & c.r: n = max(n, 12 if big else 8)
            if p.w & c.c and not (p.w == c.c and p.passes == c.passes): n = max(n, 10 if big else 6)
            if p.w & c.w and not (p.w & c.c): n = max(n, 10 if big else 6)
        elif (c.valu or c.vmem or c.ds) and p.w & (c.r | c.w): n = max(n, 12 if big else 8)
        if c.valu and p.c & c.w: n = max(n, 7 if big else 3)
    if p.vmem and p.wide and p.data & c.w: n = max(n, 2 if c.valu else 1)
    if p.salu and ("s", "m0") in p.w and c.dma: n = max(n, 1)
    return n
class Asm:
    def __init__(self):
        self.out = []; self.hist = []; self.nops = 0; self.lab = 0; self.t = 0; self.mt = -99; self.tm = True
    def raw(self, s): self.out.append(s)
    def label(self, name, reset=False):
        self.out.append(name + ":"); self.mt = -99
    def newlab(self, p="L"):
        self.lab += 1; return f"{p}_{self.lab}"
    def __call__(self, text):
        for line in text.strip().split("\n"):
            line = line.strip()
            if not line or line.startswith(";"): continue
            if line.endswith(":"): self.label(line[:-1]); continue
            ins = Ins(line)
            t = self.t
            if ins.mfma and self.tm: t = max(t, self.mt)
            pad = 0
            for p in self.hist:
                k = need(p, ins) - (t - p.t - 1)
                if k > pad: pad = k
            if pad:
                pad = max(pad + (t - self.t), 1)
                self.nops += pad
                self.out.append(f"    s_nop {pad-1}"); self.t += pad; t = self.t
            ins.t = t; self.t = t + ins.states
            if ins.mfma: self.mt = t + (8 if "32x32" in ins.mn else (2 if "16x16x16" in ins.mn else 4))
            self.hist.append(ins); self.hist = self.hist[-16:]
            self.out.append("    " + line)
    def fence(self, n=12):
        self(f"s_nop {n-1}")
    def text(self): return "\n".join(self.out) + "\n"
def vr(b, n=1): return f"v{b}" if n == 1 else f"v[{b}:{b+n-1}]"
def ar(b, n=1): return f"a{b}" if n == 1 else f"a[{b}:{b+n-1}]"
def sr(b, n=1): return f"s{b}" if n == 1 else f"s[{b}:{b+n-1}]"
def kernel_desc(name, vgpr=512, acc=256, sgpr=96):
    return f""".amdhsa_kernel {name}
  .amdhsa_next_free_vgpr {vgpr}
  .amdhsa_next_free_sgpr {sgpr}
  .amdhsa_accum_offset {acc}
  .amdhsa_group_segment_fixed_size 0
  .amdhsa_kernarg_size 104
  .amdhsa_user_sgpr_count 2
  .amdhsa_user_sgpr_kernarg_segment_ptr 1
  .amdhsa_system_sgpr_workgroup_id_x 1
.end_amdhsa_kernel
"""
```

```python
from emit import *
from layout import *
import math
SC = (1.0/16.0) * math.log2(math.e)

def add64(a, dst, src, off):
    a(f"s_add_u32 s{dst}, s{src}, {off}\ns_addc_u32 s{dst+1}, s{src+1}, 0")

def gen_k1(a):
    a.raw(".globl pre_kernel\n.p2align 8\n.type pre_kernel,@function\npre_kernel:")
    a("""
    s_load_dwordx4 s[4:7], s[0:1], 40
    s_load_dwordx4 s[8:11], s[0:1], 56
    s_load_dwordx2 s[12:13], s[0:1], 96
    s_load_dwordx2 s[14:15], s[0:1], 32
    s_load_dwordx2 s[28:29], s[0:1], 24
    s_cmp_ge_u32 s2, 256
    s_cbranch_scc1 K1_end
    v_lshrrev_b32 v1, 6, v0
    v_and_b32 v0, 63, v0
    v_readfirstlane_b32 s3, v1          ; wave
    s_and_b32 s16, s2, 7                ; x
    s_lshr_b32 s17, s2, 3               ; y
    s_cmp_ge_u32 s17, 28
    s_cbranch_scc1 K1_misc
    s_cmp_ge_u32 s17, 14
    s_cselect_b32 s18, 1, 0
    s_lshl_b32 s16, s16, 1
    s_add_u32 s16, s16, s18             ; h
    s_mul_i32 s18, s18, 14
    s_sub_u32 s17, s17, s18             ; y%14
    v_and_b32 v2, 15, v0                ; m / n_l
    v_lshrrev_b32 v3, 4, v0             ; g
    v_lshrrev_b32 v4, 2, v2
    v_and_b32 v5, 3, v2
    v_lshl_add_u32 v6, v4, 3, v5        ; pm
    s_lshl_b32 s19, s16, 9              ; h*512
    s_cmp_ge_u32 s17, 7
    s_cbranch_scc1 K1_B
    """)
    a("""
    s_lshl_b32 s20, s17, 19             ; 64p*8192
    s_add_u32 s20, s20, s19
    s_lshl_b32 s21, s3, 7               ; 2w*64 bytes
    s_add_u32 s20, s20, s21
    v_lshlrev_b32 v7, 13, v6
    v_lshl_add_u32 v7, v3, 4, v7
    v_add_u32 v7, s20, v7
    s_lshl_b32 s21, s3, 13
    s_waitcnt lgkmcnt(0)
    """)
    for ksl in range(2):
        for mt in range(4):
            off = ((mt >> 1)*32 + (mt & 1)*4)*8192 + ksl*64
            a(f"s_add_u32 m0, s21, {(ksl*4+mt)*1024}\nv_add_u32 v8, {off}, v7\nglobal_load_lds_dwordx4 v8, s[4:5]")
    a("""
    v_lshlrev_b32 v8, 4, v4             ; 16g'
    v_lshlrev_b32 v9, 1, v4
    v_min_u32 v9, 5, v9
    v_lshlrev_b32 v9, 3, v9             ; 8min(2g',5)
    v_lshrrev_b32 v17, 1, v5
    v_and_b32 v18, 1, v5
    v_lshl_add_u32 v17, v17, 2, v18     ; 4(r>>1)+(r&1)
    s_mul_i32 s22, s3, 112
    v_add_u32 v8, v8, v17
    v_add_u32 v8, s22, v8
    v_and_b32 v18, 1, v4
    v_lshl_add_u32 v18, v18, 4, v17
    v_and_b32 v19, 2, v4
    v_add3_u32 v18, v18, v19, s22
    v_add_u32 v9, v9, v17
    v_add_u32 v9, s22, v9
    v_lshlrev_b32 v19, 4, v3
    v_add_u32 v19, s19, v19             ; h*512+16g
    """)
    for t in range(7):
        src, c = (("v8", 8*(t >> 1) + 2*(t & 1)) if t < 4 else (("v9", 64 + 2*(t & 1)) if t < 6 else ("v18", 72)))
        a(f"v_add_u32 v{10+t}, {c}, {src}\nv_lshl_add_u32 v{10+t}, v{10+t}, 13, v19")
    def gemm(nload, ldfn, nB, rdfn, mm, NT_A):
        for ks in range(6): ldfn(ks)
        a(f"s_waitcnt vmcnt({6*nload})\ns_barrier")
        rdfn(0, 0)
        for ks in range(8):
            if ks < 7: rdfn(ks+1, (ks+1) & 1)
            rem = min(5, 7-ks) if ks < 2 else 7-ks
            a(f"s_waitcnt vmcnt({rem*nload}) lgkmcnt({nB if ks < 7 else 0})")
            if ks < 2: ldfn(6+ks)
            mm(ks, ks & 1)
    ACC = 32; BUF = 160
    def ldA(ks):
        for t in range(7): a(f"global_load_dwordx4 {ar((ks*7+t)*4,4)}, v{10+t}, s[6:7] offset:{64*ks}")
    a("v_lshlrev_b32 v20, 4, v0")
    def rdA(ks, bf):
        for mt in range(4): a(f"ds_read_b128 {vr(BUF+bf*16+mt*4,4)}, v20 offset:{(ks*4+mt)*1024}")
    def mmA(ks, bf):
        for t in range(7):
            for mt in range(4):
                d = vr(ACC+(t*4+mt)*4, 4)
                a(f"v_mfma_f32_16x16x32_bf16 {d}, {vr(BUF+bf*16+mt*4,4)}, {ar((ks*7+t)*4,4)}, {d if ks else 0}")
    gemm(7, ldA, 4, rdA, mmA, 7)
    a(f"""
    s_lshl_b32 s20, s16, 2
    s_add_u32 s20, s20, s3
    s_mul_i32 s20, s20, {7*14336}
    s_lshl_b32 s21, s17, 11
    s_add_u32 s20, s20, s21
    v_add_u32 v21, s20, v20
    s_mov_b32 s22, {hex(f32(SC))}
    """)
    for t in range(7):
        for kkl in range(2):
            b = ACC + (t*4 + kkl*2)*4
            o = BUF + ((t*2+kkl) % 4)*4
            for i in range(8): a(f"v_mul_f32 v{b+i}, s22, v{b+i}")
            for i in range(4): a(f"v_cvt_pk_bf16_f32 v{o+i}, v{b+2*i}, v{b+2*i+1}")
            a(f"global_store_dwordx4 v21, {vr(o,4)}, s[12:13] offset:{kkl*1024}")
        if t < 6: a(f"v_add_u32 v21, 14336, v21")
    a("s_endpgm")
    a.label("K1_B")
    a(f"""
    s_sub_u32 s17, s17, 7               ; p
    s_mul_i32 s20, s16, 229376
    s_lshl_b32 s21, s17, 7
    s_add_u32 s20, s20, s21
    s_mul_i32 s21, s3, {64*896}
    s_add_u32 s20, s20, s21
    v_lshrrev_b32 v7, 3, v0
    v_mul_u32_u24 v7, 896, v7
    v_and_b32 v8, 7, v0
    v_lshl_add_u32 v7, v8, 4, v7
    v_add_u32 v7, s20, v7
    s_lshl_b32 s21, s3, 13
    s_waitcnt lgkmcnt(0)
    """)
    for i in range(8):
        a(f"s_add_u32 m0, s21, {i*1024}\nv_add_u32 v8, {i*8*896}, v7\nglobal_load_lds_dwordx4 v8, s[10:11]")
    a("""
    s_mul_i32 s22, s3, 3
    s_min_u32 s23, s3, 1
    s_add_u32 s22, s22, s23             ; kk_start
    s_lshl_b32 s23, s22, 18             ; *32*8192
    s_add_u32 s23, s23, s19
    v_lshlrev_b32 v9, 13, v6
    v_lshl_add_u32 v9, v3, 4, v9
    v_add_u32 v9, s23, v9
    """)
    for mt in range(8): a(f"v_add_u32 v{10+mt}, {((mt>>1)*32 + (mt&1)*4)*8192}, v9")
    a("""
    v_lshl_add_u32 v20, v3, 3, v4
    v_lshlrev_b32 v20, 7, v20
    v_lshl_add_u32 v20, v5, 4, v20
    """)
    def ldB(ks):
        for mt in range(8): a(f"global_load_dwordx4 {ar((ks*8+mt)*4,4)}, v{10+mt}, s[8:9] offset:{64*ks}")
    def rdB(ks, bf):
        for nt in range(4):
            for hf in range(2):
                a(f"ds_read_b64_tr_b16 {vr(BUF+bf*16+nt*4+hf*2,2)}, v20 offset:{(32*ks+4*hf)*128 + (nt>>1)*64 + (nt&1)*8}")
    def mmB(ks, bf):
        for mt in range(8):
            for nt in range(4):
                d = vr(ACC+(mt*4+nt)*4, 4)
                a(f"v_mfma_f32_16x16x32_bf16 {d}, {ar((ks*8+mt)*4,4)}, {vr(BUF+bf*16+nt*4,4)}, {d if ks else 0}")
    gemm(8, ldB, 8, rdB, mmB, 8)
    a(f"""
    s_lshl_b32 s20, s17, 5
    s_add_u32 s20, s20, s16
    s_mul_i32 s20, s20, {2*14336}
    s_lshl_b32 s21, s22, 10
    s_add_u32 s20, s20, s21
    s_add_u32 s20, s20, {WB}
    v_lshlrev_b32 v21, 4, v0
    v_add_u32 v21, s20, v21
    """)
    cnt = 0
    for nt in range(4):
        if nt: a(f"v_add_u32 v21, {14336 if nt & 1 else 16*2*14336 - 14336}, v21")
        for kkl in range(4):
            o = BUF + (cnt % 4)*4; cnt += 1
            for i in range(4):
                b = ACC + ((kkl*2 + (i >> 1))*4 + nt)*4 + (i & 1)*2
                a(f"v_cvt_pk_bf16_f32 v{o+i}, v{b}, v{b+1}")
            a(f"global_store_dwordx4 v21, {vr(o,4)}, s[12:13] offset:{kkl*1024}")
    a("s_endpgm")
    a.label("K1_misc")
    a(f"""
    s_sub_u32 s17, s17, 28
    s_lshl_b32 s17, s17, 3
    s_add_u32 s17, s17, s16             ; id 0..31
    s_lshl_b32 s18, s17, 12
    s_lshl_b32 s19, s3, 10
    s_add_u32 s18, s18, s19
    v_lshlrev_b32 v2, 4, v0
    v_add_u32 v3, s18, v2
    v_add_u32 v2, s19, v2               ; tid*16
    v_mov_b32 v4, -1
    v_mov_b32 v5, -1
    v_mov_b32 v6, -1
    v_mov_b32 v7, -1
    s_mov_b32 s23, 0x20000
    s_lshl_b32 s24, s17, 1
    s_lshr_b32 s25, s3, 1
    s_add_u32 s24, s24, s25
    s_mul_i32 s24, s24, 28672
    s_and_b32 s25, s3, 1
    s_mul_i32 s26, s25, 448
    s_add_u32 s26, s26, s24
    v_and_b32 v8, 15, v0
    v_lshrrev_b32 v9, 4, v0
    v_mul_u32_u24 v8, 896, v8
    v_lshl_add_u32 v8, v9, 4, v8
    v_add_u32 v8, s26, v8
    v_add_u32 v9, 14336, v8
    s_mul_i32 s25, s25, 14336
    s_add_u32 s24, s24, s25
    s_add_u32 s24, s24, {XI + 4096}
    v_lshlrev_b32 v10, 4, v0
    v_add_u32 v10, s24, v10
    v_add_u32 v11, 8192, v10
    s_waitcnt lgkmcnt(0)
    """)
    for i in range(14): a(f"global_load_dwordx4 {vr(32+4*i,4)}, v{8+(i&1)}, s[28:29] offset:{(i>>1)*64}")
    for base, size, n in ((MX+7168, 451584, 4), (MY+7168, 451584, 4), (PS, 645120, 5)):
        add64(a, 20, 12, base)
        a(f"s_mov_b32 s22, {size}")
        for i in range(n):
            a(f"s_mov_b32 s24, {i*131072}\nbuffer_store_dwordx4 v[4:7], v3, s[20:23], s24 offen")
    a("s_waitcnt vmcnt(13)")
    for i in range(14): a(f"global_store_dwordx4 v{10+(i>>3)}, {vr(32+4*i,4)}, s[12:13] offset:{(i&7)*1024-4096}")
    a(f"""
    s_cmp_gt_u32 s17, 9
    s_cbranch_scc1 K1_end
    s_cmp_lt_u32 s17, 2
    s_cbranch_scc1 K1_mem0
    v_mov_b32 v8, 0
    v_mov_b32 v9, 0
    v_mov_b32 v10, 0
    v_mov_b32 v11, 0
    v_add_u32 v3, {FL - 8192}, v3
    global_store_dwordx4 v3, v[8:11], s[12:13]
    s_endpgm
K1_mem0:
    v_lshrrev_b32 v8, 4, v3
    v_cmp_gt_u32 vcc, 448, v8
    s_and_saveexec_b64 s[26:27], vcc
    s_cbranch_execz K1_end
    v_and_b32 v9, 7, v8
    v_mul_u32_u24 v9, 896, v9
    v_lshrrev_b32 v10, 3, v8
    v_lshl_add_u32 v10, v10, 4, v9
    global_load_dwordx4 v[12:15], v10, s[14:15]
    v_lshrrev_b32 v10, 4, v8
    v_lshl_add_u32 v9, v10, 5, v9
    v_bfe_u32 v10, v8, 3, 1
    v_lshl_add_u32 v9, v10, 2, v9
    global_load_dword v16, v9, s[14:15]
    global_load_dword v17, v9, s[14:15] offset:8
    global_load_dword v18, v9, s[14:15] offset:16
    global_load_dword v19, v9, s[14:15] offset:24
    v_add_u32 v20, {NX}, v3
    v_add_u32 v21, {NY}, v3
    v_add_u32 v22, {MX}, v3
    v_add_u32 v23, {MY}, v3
    s_mov_b32 s24, -2
    s_waitcnt vmcnt(0)
    """)
    for i in range(12, 20): a(f"v_min_u32 v{i}, s24, v{i}")
    a("""
    global_store_dwordx4 v20, v[12:15], s[12:13]
    global_store_dwordx4 v21, v[12:15], s[12:13]
    global_store_dwordx4 v22, v[16:19], s[12:13]
    global_store_dwordx4 v23, v[16:19], s[12:13]
K1_end:
    s_endpgm
    """)
```

```python
WA = 0
WB = WA + 16*401408
MX = WB + 14*458752
NX = MX + 64*7168
MY = NX + 64*7168
NY = MY + 64*7168
PS = NY + 64*7168
FL = PS + 64*10240
PX = FL + 32768
XT = PX + 64*16*3072
WT = XT + 512*4096
ZT = WT + 228*8192
VO = ZT + 57*32768
XI = VO + 64*14*32768
END = XI + 64*28672
F_VO = 0; F_PX = 4096
C0 = 8192
C_W = C0; C_CNT = C0 + 128; C_WCNT = C0 + 128*9; C_MASK = C0 + 128*10; C_READY = C0 + 128*11
C_QVO = C0 + 128*12; C_QOUT = C_QVO + 128*14; C_QA = C_QOUT + 128*14
C_Q1 = C_QA + 128*16; C_Q2 = C_Q1 + 128; C_Q3 = C_Q2 + 128; C_D1 = C_Q3 + 128; C_D2 = C_D1 + 128
assert C_D2 + 128 <= 32768
def colA(w, tile, nl):
    g, r = nl >> 2, nl & 3
    if tile < 4: return 112*w + 16*g + 8*(tile >> 1) + 4*(r >> 1) + 2*(tile & 1) + (r & 1)
    if tile < 6: return 112*w + 64 + 8*min(2*g, 5) + 4*(r >> 1) + 2*(tile & 1) + (r & 1)
    return 112*w + 72 + 16*(g & 1) + 4*(r >> 1) + 2*(g >> 1) + (r & 1)
def colB(b, t, c): return 32*b + 8*(c >> 2) + 4*t + (c & 3)
if __name__ == "__main__":
    assert sorted(colA(w, t, n) for w in range(4) for t in range(7) for n in range(16)) == list(range(448))
    for k, v in list(globals().items()):
        if isinstance(v, int): print(k, v, hex(v))
```
